```python
import torch

def _softmax(x, axis=-1):
    return torch.softmax(x, dim=axis)
def _gelu(x):
    return torch.nn.functional.gelu(x, approximate="tanh")
def _silu(x):
    return torch.nn.functional.silu(x)
def _sigmoid(x):
    return torch.sigmoid(x)
def _layernorm(x, axis=-1, eps=1e-5):
    m = x.mean(dim=axis, keepdim=True)
    v = x.var(dim=axis, keepdim=True, unbiased=False)
    return (x - m) / torch.sqrt(v + eps)
def _scatter_add(tgt, idx, src, axis=0):
    return tgt.clone().index_add_(axis, idx, src)
def _segment_sum(src, seg, n):
    out = torch.zeros((n,) + src.shape[1:], dtype=src.dtype)
    return out.index_add_(0, seg, src)
def _pad(x, pw):
    flat = tuple(v for pair in reversed(pw) for v in pair)
    return torch.nn.functional.pad(x, flat)

kernel_name = 'concat_heads__gqa_block_cached__mha_block_cached__near_ridge'

def setup_inputs():

    _w = (lambda a: (lambda t: t.to(torch.bfloat16) if t.is_floating_point() else t)(torch.as_tensor(a)))
    def _A_setup():
        B, Sq, D = 8, 96, 640
        Hq, Hkv, Sk, Dh = 32, 32, 1024, 128
        assert Hq % Hkv == 0, (Hq, Hkv)
        return {
            "x": _w((lambda *s: torch.randn(*s, dtype=torch.bfloat16) * 0.8)(B, Sq, D)),
            "k_cache": _w((lambda *s: torch.randn(*s, dtype=torch.bfloat16) * 0.8)(B, Hkv, Sk, Dh)),
            "v_cache": _w((lambda *s: torch.randn(*s, dtype=torch.bfloat16) * 0.05)(B, Hkv, Sk, Dh)),
            "wq": _w((lambda *s: torch.randn(*s, dtype=torch.bfloat16) * 0.8)(D, Hq * Dh) * (D ** -0.5)),
            "wo": _w((lambda *s: torch.randn(*s, dtype=torch.bfloat16) * 0.05)(Hq * Dh, D) * ((Hq * Dh) ** -0.5)),
        }
    _A_in = _A_setup()

    def _B_setup():
        B, Sq, D = 8, 96, 640
        H, Sk, Dh = 32, 1024, 128
        return {
            "x": _w((lambda *s: torch.randn(*s, dtype=torch.bfloat16) * 0.8)(B, Sq, D)),
            "k_cache": _w((lambda *s: torch.randn(*s, dtype=torch.bfloat16) * 0.8)(B, H, Sk, Dh)),
            "v_cache": _w((lambda *s: torch.randn(*s, dtype=torch.bfloat16) * 0.05)(B, H, Sk, Dh)),
            "wq": _w((lambda *s: torch.randn(*s, dtype=torch.bfloat16) * 0.8)(D, H * Dh) * (D ** -0.5)),
            "wo": _w((lambda *s: torch.randn(*s, dtype=torch.bfloat16) * 0.05)(H * Dh, D) * ((H * Dh) ** -0.5)),
        }
    _B_in = _B_setup()

    return {
        "A_x": _A_in["x"],
        "A_k_cache": _A_in["k_cache"],
        "A_v_cache": _A_in["v_cache"],
        "A_wq": _A_in["wq"],
        "A_wo": _A_in["wo"],
        "B_x": _B_in["x"],
        "B_k_cache": _B_in["k_cache"],
        "B_v_cache": _B_in["v_cache"],
        "B_wq": _B_in["wq"],
        "B_wo": _B_in["wo"],
    }

def reference(A_x, A_k_cache, A_v_cache, A_wq, A_wo, B_x, B_k_cache, B_v_cache, B_wq, B_wo):
    def _A_ref(x, k_cache, v_cache, wq, wo):
        B, Sq, D = x.shape
        Hq, Dh = 32, 128
        Hkv = k_cache.shape[1]
        rep = Hq // Hkv
        q = (lambda x, *d: x.permute(*d))((x @ wq).reshape(B, Sq, Hq, Dh), 0, 2, 1, 3)
        k = (lambda x, n, axis: torch.repeat_interleave(x, n, dim=axis))(k_cache, rep, axis=1)
        v = (lambda x, n, axis: torch.repeat_interleave(x, n, dim=axis))(v_cache, rep, axis=1)
        scores = torch.einsum("bhqd,bhkd->bhqk", q, k) * (Dh ** -0.5)
        p = _softmax(scores, axis=-1)
        o = torch.einsum("bhqk,bhkd->bhqd", p, v)
        return (lambda x, *d: x.permute(*d))(o, 0, 2, 1, 3).reshape(B, Sq, Hq * Dh) @ wo

    def _B_ref(x, k_cache, v_cache, wq, wo):
        B, Sq, D = x.shape
        H, Dh = 32, 128
        q = (lambda x, *d: x.permute(*d))((x @ wq).reshape(B, Sq, H, Dh), 0, 2, 1, 3)
        scores = torch.einsum("bhqd,bhkd->bhqk", q, k_cache) * (Dh ** -0.5)
        p = _softmax(scores, axis=-1)
        o = torch.einsum("bhqk,bhkd->bhqd", p, v_cache)
        return (lambda x, *d: x.permute(*d))(o, 0, 2, 1, 3).reshape(B, Sq, H * Dh) @ wo

    a = _A_ref(A_x, A_k_cache, A_v_cache, A_wq, A_wo)
    b = _B_ref(B_x, B_k_cache, B_v_cache, B_wq, B_wo)
    return torch.concatenate([a, b], axis=-1)
```

```python
import re

class Asm:
    def __init__(self):
        self.lines = []
    def raw(self, s):
        self.lines.append(s)
    def i(self, s):
        self.lines.append("    " + s)
    def label(self, s):
        self.lines.append(s + ":")
    def c(self, s):
        self.lines.append("    ; " + s)
    def text(self):
        return "\n".join(self.lines) + "\n"

def v(n, cnt=1):
    return f"v{n}" if cnt == 1 else f"v[{n}:{n+cnt-1}]"
def a(n, cnt=1):
    return f"a{n}" if cnt == 1 else f"a[{n}:{n+cnt-1}]"
def s(n, cnt=1):
    return f"s{n}" if cnt == 1 else f"s[{n}:{n+cnt-1}]"

_reg = re.compile(r"(?<![\w.])([vas])(?:(\d+)|\[(\d+):(\d+)\])")
def regs_of(op):
    out = set()
    for m in _reg.finditer(op):
        k = m.group(1)
        if m.group(2) is not None:
            out.add((k, int(m.group(2))))
        else:
            for r in range(int(m.group(3)), int(m.group(4)) + 1):
                out.add((k, r))
    if re.search(r"\bvcc\b", op): out.add(("x", "vcc"))
    if re.search(r"\bm0\b", op): out.add(("x", "m0"))
    return out

TRANS = ("v_exp_f32", "v_rcp_f32", "v_log_f32", "v_rsq_f32", "v_sqrt_f32")
def parse(line):
    line = line.split(";")[0].strip()
    if not line or line.endswith(":") or line.startswith("."):
        return None
    parts = line.split(None, 1)
    op = parts[0]
    ops = [o.strip() for o in parts[1].split(",")] if len(parts) > 1 else []
    d = dict(op=op, ops=ops, text=line, w=set(), r=set(), kind="other", ws=1)
    if op == "s_nop":
        d["ws"] = int(ops[0]) + 1
    elif op.startswith("v_mfma"):
        d["kind"] = "mfma"; d["w"] = regs_of(ops[0]); d["ra"] = regs_of(ops[1]) | regs_of(ops[2])
        d["rc"] = regs_of(ops[3]); d["r"] = d["ra"] | d["rc"]
        d["passes"] = 8 if "32x32" in op else 4
    elif op.startswith("v_"):
        d["kind"] = "valu"
        d["w"] = regs_of(ops[0]); d["r"] = set()
        for o in ops[1:]: d["r"] |= regs_of(o)
        if op.startswith("v_permlane"):
            d["w"] |= regs_of(ops[1]); d["r"] |= regs_of(ops[0])
        if op.startswith("v_fmac"):
            d["r"] |= regs_of(ops[0])
    elif op.startswith("ds_read"):
        d["kind"] = "ds"; d["w"] = regs_of(ops[0]); d["r"] = regs_of(ops[1])
    elif op.startswith("ds_write"):
        d["kind"] = "ds"; d["r"] = set().union(*[regs_of(o) for o in ops])
    elif op.startswith("buffer_load") or op.startswith("global_load"):
        d["kind"] = "vmem"
        if line.rstrip().endswith("lds") or " lds" in line:
            d["r"] = set().union(*[regs_of(o) for o in ops]) | {("x", "m0")}; d["dma"] = True
        else:
            d["w"] = regs_of(ops[0]); d["r"] = set().union(*[regs_of(o) for o in ops[1:]])
    elif op.startswith("buffer_store") or op.startswith("global_store") or "atomic" in op:
        d["kind"] = "vmem"; d["r"] = set().union(*[regs_of(o) for o in ops]); d["store"] = True
        d["sdata"] = regs_of(ops[0]) if op.startswith("buffer") else regs_of(ops[1])
    elif op.startswith("s_"):
        d["kind"] = "salu"
        if ops and not op.startswith(("s_cmp", "s_cbranch", "s_branch", "s_waitcnt", "s_barrier", "s_setprio")):
            d["w"] = regs_of(ops[0])
            for o in ops[1:]: d["r"] |= regs_of(o)
        else:
            for o in ops: d["r"] |= regs_of(o)
    return d

def check_hazards(lines, name=""):
    ins = [p for p in (parse(l) for l in lines) if p]
    errs = []
    for i, c in enumerate(ins):
        dist = 0
        for j in range(i - 1, max(-1, i - 24), -1):
            p = ins[j]
            need = 0
            if p["kind"] == "mfma":
                big = p["passes"] == 8
                if c["kind"] == "mfma":
                    if p["w"] & c["ra"]: need = 12 if big else 8
                    elif p["w"] & c["rc"] and p["w"] != c["rc"]: need = 10 if big else 6
                    elif (p["w"] & c["w"]) and p["w"] != c["rc"] and not (p["w"] == c["w"]): need = 10 if big else 6
                elif c["kind"] in ("valu", "ds", "vmem"):
                    if p["w"] & (c["r"] | c["w"]): need = 12 if big else 8
                    if c["kind"] == "valu" and p["rc"] & c["w"]: need = max(need, 7 if big else 3)
            elif p["kind"] == "valu":
                vw = {r for r in p["w"] if r[0] in "va"}
                sw = {r for r in p["w"] if r[0] == "s" or r == ("x", "vcc")}
                if c["kind"] == "mfma" and vw & c["r"]: need = 2
                if c["kind"] == "valu":
                    if c["op"].startswith("v_permlane") and vw & c["r"]: need = 2
                    if c["op"].startswith(("v_readfirstlane", "v_readlane")) and vw & c["r"]: need = max(need, 1)
                    if p["op"].startswith(TRANS) and not c["op"].startswith(TRANS) and vw & c["r"]: need = max(need, 1)
                    if sw & c["r"]: need = max(need, 2)
                if c["kind"] == "vmem" and sw & c["r"]: need = 5
            elif p["kind"] == "salu":
                if ("x", "m0") in p["w"] and c.get("dma"): need = 1
            elif p["kind"] == "vmem" and p.get("store"):
                if len(p["sdata"]) >= 3 and p["sdata"] & c["w"]: need = 2
            if need > dist:
                errs.append(f"{name}: hazard need {need} have {dist}: [{p['text']}] -> [{c['text']}]")
            dist += p["ws"]
    return errs

def interleave(mfmas, gaps):
    out = list(gaps.get(-1, []))
    for k, m in enumerate(mfmas):
        out.append(m)
        out += gaps.get(k, [])
    return out
```

```python
import sys, math, struct
from asmlib import *

NT = " nt" if "--nt" in sys.argv else ""
NOCOMPUTE = "--nocompute" in sys.argv
K1ONLY = "--k1only" in sys.argv
K2ONLY = "--k2only" in sys.argv
out_path = [x for x in sys.argv[1:] if not x.startswith("--")][0]

def fbits(x): return "0x%08x" % struct.unpack("<I", struct.pack("<f", x))[0]
CSC = (128 ** -0.5) * math.log2(math.e)
THR = 8.0

A = Asm()
hdr = open("concat_heads__gqa_block_cached__mha_block_cached__near_ridge.s.ref").read().split("\n")
for l in hdr:
    if l.startswith(";") and "@launch" not in l and "Override" not in l and "grid=ceil" not in l: A.raw(l)
    elif not l.startswith(";"): break
if not K2ONLY: A.raw("; @launch kernel=attn_kernel grid=(256,1,1) block=(320,1,1) lds=131072")
if not K1ONLY: A.raw("; @launch kernel=oproj_kernel grid=(240,1,1) block=(256,1,1) lds=114688")
A.raw('.amdgcn_target "amdgcn-amd-amdhsa--gfx950"')
A.raw(".text")

NQ = 20
NSTEP = 54
RING = 8
VRING = 65536

A.raw(".globl attn_kernel"); A.raw(".p2align 8"); A.raw(".type attn_kernel,@function"); A.label("attn_kernel")
I = A.i
I("s_cmp_ge_u32 s2, 256"); I("s_cbranch_scc1 L1_end")
I("s_load_dwordx16 s[16:31], s[0:1], 0")
I("s_load_dwordx4 s[32:35], s[0:1], 64")
I("s_load_dwordx2 s[36:37], s[0:1], 96")
I("v_lshrrev_b32 v1, 6, v0")
I("v_and_b32 v0, 63, v0")
I("s_and_b32 s3, s2, 7")
I("v_readfirstlane_b32 s4, v1")
I("s_lshr_b32 s5, s2, 3")
I("s_and_b32 s51, s5, 1")
I("s_lshr_b32 s6, s5, 1"); I("s_and_b32 s6, s6, 3")
I("s_lshl_b32 s48, s3, 2"); I("s_add_u32 s48, s48, s6")
I("s_lshr_b32 s49, s5, 3")
I("s_add_u32 s50, s49, 4")
for p in range(2):
    I(f"s_lshl_b32 s{52+p}, s{49+p}, 5"); I(f"s_add_u32 s{52+p}, s{52+p}, s48"); I(f"s_lshl_b32 s{52+p}, s{52+p}, 18")
I("s_mov_b32 s43, 0x20000"); I("s_mov_b32 s47, 0x20000")
I("s_waitcnt lgkmcnt(0)")
I("s_cmp_eq_u32 s4, 3"); I("s_cbranch_scc1 L1_ld0")
I("s_cmp_eq_u32 s4, 4"); I("s_cbranch_scc1 L1_ld1")

Q=8; O=40; S=[104,120]; P=[136,144]; KF=152; VF=184; KST=216; VST=224; WST=228; XST=232; KA=234; VA=242
M=246; MT=247; L0=248; L1=249; F=250; T0=251; T1=252; VOFF=253
sC=54; sIC=55; sSlot=56; sFlag=57; sCnt=58; sPass=59; sOb=60; sOb2=61; sB=62

pro = []
e = pro.append
e("s_mov_b32 s40, s36"); e("s_mov_b32 s41, s37"); e("s_mov_b32 s42, 12582912")
e(f"s_mov_b32 s{sC}, {fbits(CSC)}"); e(f"s_mov_b32 s{sIC}, {fbits(1.0/CSC)}")
e(f"s_mov_b32 s{sSlot}, 0"); e(f"s_mov_b32 s{sFlag}, 0"); e(f"s_mov_b32 s{sPass}, 0"); e(f"s_mov_b32 s{sB}, s49")
e(f"v_lshlrev_b32 v{VOFF}, 4, v0")
e("v_and_b32 v1, 31, v0")
e("v_lshrrev_b32 v2, 5, v0")
e("v_and_b32 v3, 15, v1"); e("v_xor_b32 v3, v3, v2"); e("v_lshlrev_b32 v3, 4, v3")
e("v_lshl_add_u32 v3, v1, 8, v3")
for s_ in range(8): e(f"v_xor_b32 v{KST+s_}, {32*s_}, v3")
e("s_lshl_b32 s7, s4, 5"); e("v_add_u32 v4, s7, v1")
e("v_lshrrev_b32 v5, 2, v1"); e("v_and_b32 v5, 3, v5"); e("v_xor_b32 v5, v5, v2"); e("v_lshlrev_b32 v5, 4, v5")
e(f"v_lshl_add_u32 v{XST}, v4, 6, v5"); e(f"v_xor_b32 v{XST+1}, 32, v{XST}")
e("v_lshrrev_b32 v3, 2, v0"); e("v_and_b32 v3, 3, v3")
e("v_lshrrev_b32 v4, 4, v0"); e("v_and_b32 v4, 1, v4"); e("v_lshlrev_b32 v4, 5, v4")
e("v_and_b32 v5, 1, v0"); e("v_lshl_add_u32 v4, v5, 4, v4")
e("v_and_b32 v5, 2, v0"); e("v_lshl_add_u32 v4, v5, 2, v4")
e("v_lshl_add_u32 v4, v3, 8, v4")
e("v_lshl_add_u32 v4, v3, 6, v4")
e(f"v_add_u32 v4, {VRING}, v4")
e("v_lshl_add_u32 v5, v2, 10, v4")
e("v_lshl_add_u32 v6, v2, 11, v4")
for w in range(4):
    e(f"v_xor_b32 v{VST+w}, {64*w}, v5"); e(f"v_xor_b32 v{WST+w}, {64*w}, v6")

def addr_qp():
    o = [f"v_add_u32 v{KA+i}, s{sSlot}, v{XST+i}" for i in range(2)]
    o += [f"v_add_u32 v{VA+i}, s{sSlot}, v{WST+i}" for i in range(4)]
    return o
def addr_at():
    o = [f"v_add_u32 v{KA+i}, s{sSlot}, v{KST+i}" for i in range(8)]
    o += [f"v_add_u32 v{VA+i}, s{sSlot}, v{VST+i}" for i in range(4)]
    return o
def adv_slot():
    return [f"s_add_u32 s{sSlot}, s{sSlot}, 16384", f"s_and_b32 s{sSlot}, s{sSlot}, 0xffff"]
def mf(d, a_, b_, c=None):
    cc = v(d, 16) if c is None else c
    return f"v_mfma_f32_32x32x16_bf16 {v(d,16)}, {v(a_,4)}, {v(b_,4)}, {cc}"

def qp_reads(par):
    buf = VF if par else KF
    xb = S[par]
    so = 8192 * par
    o = [f"ds_read_b128 {v(xb+4*s_,4)}, v{KA+s_} offset:{so}" for s_ in range(2)]
    for s_ in range(2):
        for w in range(4):
            for ee in range(2):
                o.append(f"ds_read_b64_tr_b16 {v(buf+(s_*4+w)*4+2*ee,2)}, v{VA+w} offset:{so+4096*s_+1024*ee}")
    return o
def qp_mfmas(par, first=False):
    buf = VF if par else KF
    xb = S[par]
    return [mf(O+16*w, buf+(s_*4+w)*4, xb+4*s_, "0" if (first and s_ == 0) else None) for s_ in range(2) for w in range(4)]
def qp_step(par, do_mfma=True, first=False, tail=None):
    o = ["s_barrier"]
    rd = qp_reads(par)
    if do_mfma:
        mm = qp_mfmas(1 - par, first)
        gaps = {-1: rd[:4]}
        rest = rd[4:]
        for k in range(7): gaps[k] = rest[2*k:2*k+2]
        o += interleave(mm, gaps)
    else:
        o += rd
    if tail: o += tail
    o.append("s_waitcnt lgkmcnt(0)")
    return o

def k_reads(par): return [f"ds_read_b128 {v(KF+4*s_,4)}, v{KA+s_} offset:{8192*par}" for s_ in range(8)]
def v_reads(par, kb):
    return [f"ds_read_b64_tr_b16 {v(VF+(kb*4+w)*4+2*ee,2)}, v{VA+w} offset:{8192*par+4096*kb+2048*ee}" for w in range(4) for ee in range(2)]
def qk_mfmas(par): return [mf(S[par], KF+4*s_, Q+4*s_, "0" if s_ == 0 else None) for s_ in range(8)]
def pv_mfmas(par): return [mf(O+16*w, VF+(kb*4+w)*4, P[par]+4*kb) for kb in range(2) for w in range(4)]
def max_ops(sb):
    o = [f"v_max3_f32 v{T0}, v{sb}, v{sb+1}, v{sb+2}", f"v_max3_f32 v{T1}, v{sb+3}, v{sb+4}, v{sb+5}",
         f"v_max3_f32 v{T0}, v{T0}, v{sb+6}, v{sb+7}", f"v_max3_f32 v{T1}, v{T1}, v{sb+8}, v{sb+9}",
         f"v_max3_f32 v{T0}, v{T0}, v{sb+10}, v{sb+11}", f"v_max3_f32 v{T1}, v{T1}, v{sb+12}, v{sb+13}",
         f"v_max3_f32 v{T0}, v{T0}, v{sb+14}, v{sb+15}", f"v_max_f32 v{T0}, v{T0}, v{T1}"]
    return o
def sm_ops(sb, pb):
    o = []
    for i in range(16 + 3):
        if i < 16: o.append(f"v_fma_f32 v{sb+i}, v{sb+i}, s{sC}, -v{M}")
        if 0 <= i - 1 < 16: o.append(f"v_exp_f32 v{sb+i-1}, v{sb+i-1}")
        j = i - 3
        if 0 <= j < 16:
            o.append(f"v_add_f32 v{L0+(j&1)}, v{L0+(j&1)}, v{sb+j}")
            if j & 1: o.append(f"v_cvt_pk_bf16_f32 v{pb+(j>>1)}, v{sb+j-1}, v{sb+j}")
    return o
def newmax_ops(first):
    o = [f"v_mov_b32 v{T1}, v{T0}", "s_nop 1", f"v_permlane32_swap_b32 v{T0}, v{T1}", "s_nop 0",
         f"v_max_f32 v{T0}, v{T0}, v{T1}", f"v_mul_f32 v{T0}, s{sC}, v{T0}"]
    if first:
        o += [f"v_mov_b32 v{M}, v{T0}", f"v_mov_b32 v{L0}, 0", f"v_mov_b32 v{L1}, 0"]
    else:
        o += [f"v_max_f32 v{T0}, v{T0}, v{M}", f"v_sub_f32 v{F}, v{M}, v{T0}", f"v_exp_f32 v{F}, v{F}",
              f"v_mov_b32 v{M}, v{T0}", f"v_mul_f32 v{L0}, v{L0}, v{F}", f"v_mul_f32 v{L1}, v{L1}, v{F}",
              f"s_mov_b32 s{sFlag}, 1"]
    o += [f"v_add_f32 v{MT}, {fbits(THR)}, v{M}", f"v_mul_f32 v{MT}, s{sIC}, v{MT}"]
    return o

ool = []
site = [0]
def spread(ops, g0, g1, gaps):
    n = g1 - g0 + 1
    for k in range(n):
        lo = len(ops) * k // n; hi = len(ops) * (k + 1) // n
        gaps.setdefault(g0 + k, []).extend(ops[lo:hi])

def at_step(par, qk=True, pv=True, tail=None):
    n = site[0]; site[0] += 1
    o = ["s_barrier"]
    sb = S[1 - par]; pb = P[1 - par]
    mm = pv_mfmas(par) + (qk_mfmas(par) if qk else [])
    gaps = {-1: (k_reads(par) if qk else ["s_nop 7"])}
    mx = max_ops(sb)
    gaps[0] = mx[:4]; gaps[1] = mx[4:] + [f"v_cmp_gt_f32 vcc, v{T0}, v{MT}", f"s_cbranch_vccnz L1_rare{n}", f"L1_back{n}:"]
    ool.append([f"L1_rare{n}:"] + newmax_ops(False) + [f"s_branch L1_back{n}"])
    last = len(mm) - 1
    spread(sm_ops(sb, pb), 2, last, gaps)
    if qk:
        spread(v_reads(par, 0), 4, 7, gaps)
        gaps[7].append("s_waitcnt lgkmcnt(8)")
        spread(v_reads(par, 1), 8, 13, gaps)
    else:
        spread(v_reads(par, 0), 4, 6, gaps)
        gaps[7] = v_reads(par, 1) + gaps[7]
    o += interleave(mm, gaps)
    if tail: o += tail
    if not qk: o.append("s_nop 7")
    o += [f"s_cmp_lg_u32 s{sFlag}, 0", f"s_cbranch_scc1 L1_resc{n}", f"L1_rback{n}:"]
    ool.append([f"L1_resc{n}:"] + [f"v_mul_f32 v{O+i}, v{O+i}, v{F}" for i in range(64)] + [f"s_mov_b32 s{sFlag}, 0", f"s_branch L1_rback{n}"])
    o.append("s_waitcnt lgkmcnt(0)")
    return o

def at_step0():
    o = ["s_barrier"] + k_reads(0) + qp_mfmas(1) + ["s_nop 8"]
    for s_ in range(8):
        for t in range(4):
            src = O + 16 * (s_ >> 1) + 8 * (s_ & 1) + 2 * t
            o.append(f"v_cvt_pk_bf16_f32 v{Q+4*s_+t}, v{src}, v{src+1}")
    o += ["s_waitcnt lgkmcnt(0)", "s_nop 0"] + qk_mfmas(0)
    return o
def at_step1(tail):
    o = ["s_barrier"] + k_reads(1) + v_reads(1, 0)[:6]
    o += [f"v_mov_b32 v{O+i}, 0" for i in range(8)]
    o += ["s_waitcnt lgkmcnt(6)"]
    mm = qk_mfmas(1)
    gaps = {}
    ops = max_ops(S[0]) + newmax_ops(True) + sm_ops(S[0], P[0]) + [f"v_mov_b32 v{O+i}, 0" for i in range(8, 64)]
    spread(ops, 0, 7, gaps)
    gaps[0] = v_reads(1, 0)[6:] + gaps[0]
    gaps[1] = v_reads(1, 1)[:4] + gaps[1]
    gaps[2] = v_reads(1, 1)[4:] + gaps[2]
    o += interleave(mm, gaps) + tail + ["s_waitcnt lgkmcnt(0)"]
    return o
def at_last(tail):
    o = ["s_barrier"] + pv_mfmas(1)
    o += [f"v_add_f32 v{L0}, v{L0}, v{L1}", f"v_mov_b32 v{L1}, v{L0}", "s_nop 1", f"v_permlane32_swap_b32 v{L0}, v{L1}", "s_nop 0",
          f"v_add_f32 v{L0}, v{L0}, v{L1}", f"v_rcp_f32 v{L0}, v{L0}"]
    o += [f"s_mul_i32 s{sOb}, s51, 24", f"s_mul_i32 s{sOb2}, s{sB}, 3", f"s_add_u32 s{sOb}, s{sOb}, s{sOb2}", f"s_add_u32 s{sOb}, s{sOb}, s4",
          f"s_lshl_b32 s{sOb}, s{sOb}, 5", f"s_add_u32 s{sOb}, s{sOb}, s48", f"s_lshl_b32 s{sOb}, s{sOb}, 13", f"s_add_u32 s{sOb2}, s{sOb}, 4096", "s_nop 1"]
    for s_ in range(8):
        src = O + 16 * (s_ >> 1) + 8 * (s_ & 1)
        for t in range(8): o.append(f"v_mul_f32 v{src+t}, v{src+t}, v{L0}")
        for t in range(4): o.append(f"v_cvt_pk_bf16_f32 v{KF+4*s_+t}, v{src+2*t}, v{src+2*t+1}")
        o.append(f"buffer_store_dwordx4 {v(KF+4*s_,4)}, v{VOFF}, s[40:43], s{sOb if s_<4 else sOb2} offen offset:{1024*(s_&3)}")
    o += tail
    return o

def emit(lst):
    for x in lst:
        if x.endswith(":"): A.raw(x)
        else: I(x)

if NOCOMPUTE:
    I(f"s_mov_b32 s{sCnt}, {2*NSTEP}")
    A.label("L1_nc"); I("s_barrier"); I(f"s_sub_u32 s{sCnt}, s{sCnt}, 1"); I(f"s_cmp_lg_u32 s{sCnt}, 0"); I("s_cbranch_scc1 L1_nc")
    I("s_endpgm")
else:
    pro += addr_qp()
    emit(pro)
    A.label("L1_head")
    q0 = qp_step(0, do_mfma=False)
    q1 = qp_step(1, first=True, tail=adv_slot() + addr_qp())
    qa = qp_step(0)
    qb = qp_step(1, tail=adv_slot() + addr_qp())
    emit(q0); emit(q1)
    I(f"s_mov_b32 s{sCnt}, 9")
    A.label("L1_qloop")
    emit(qa); emit(qb)
    I(f"s_sub_u32 s{sCnt}, s{sCnt}, 1"); I(f"s_cmp_lg_u32 s{sCnt}, 0"); I("s_cbranch_scc1 L1_qloop")
    aa = addr_at()
    emit(aa)
    a0 = at_step0(); a1 = at_step1(adv_slot() + addr_at())
    emit(a0); emit(a1)
    I(f"s_mov_b32 s{sCnt}, 15")
    A.label("L1_aloop")
    ae = at_step(0); ao = at_step(1, tail=adv_slot() + addr_at())
    emit(ae); emit(ao)
    I(f"s_sub_u32 s{sCnt}, s{sCnt}, 1"); I(f"s_cmp_lg_u32 s{sCnt}, 0"); I("s_cbranch_scc1 L1_aloop")
    a32 = at_step(0, qk=False)
    a33 = at_last(adv_slot() + addr_qp())
    emit(a32); emit(a33)
    I(f"s_mov_b32 s{sB}, s50")
    I(f"s_add_u32 s{sPass}, s{sPass}, 1"); I(f"s_cmp_lt_u32 s{sPass}, 2"); I("s_cbranch_scc1 L1_head")
    I("s_endpgm")
    for blk in ool: emit(blk)
    trace = pro + q0 + q1 + qa + qb + qa + qb + aa + a0 + a1 + ae + ao + ae + ao + a32 + a33 + q0 + q1
    errs = check_hazards(trace, "K1")
    def with_ool(step):
        t = []
        for x in step:
            t.append(x)
            if x.startswith("s_cbranch") and ("L1_rare" in x or "L1_resc" in x):
                lab = x.split()[1] + ":"
                t += [b for b in ool if b[0] == lab][0]
        return t
    errs += check_hazards(a1 + with_ool(ae) + with_ool(ao) + with_ool(ae) + with_ool(ao) + with_ool(a32) + a33, "K1rare")
    for x in errs: print(x)
    assert not errs

def loader(which):
    items = []
    for p in range(2):
        for t in range(NQ): items.append(("q", p, t))
        if which == 0:
            for t in range(32): items.append(("kv", p, t))
            items += [None, None]
        else:
            items.append(None)
            for t in range(32): items.append(("kv", p, t))
            items.append(None)
    N = len(items)
    def cnt(j):
        if j >= N or items[j] is None: return 0
        return 6 if (which == 0 and items[j][0] == "q") else 8
    ringbase = 0 if which == 0 else VRING
    def issue(j):
        if cnt(j) == 0: return
        kind, p, t = items[j]
        slot = ringbase + (j % RING) * 8192
        if kind == "kv":
            for half in range(2):
                I(f"s_mov_b32 m0, {slot + 4096*half}")
                I(f"s_add_u32 s60, s{52+p}, {t*8192 + 4096*half}")
                for i in range(4):
                    vo = 4 + i if which == 0 else 4
                    I(f"buffer_load_dwordx4 v{vo}, s[44:47], s60 offen offset:{1024*i}{NT} lds")
        else:
            n = cnt(j)
            for i in range(n):
                if i % 4 == 0: I(f"s_mov_b32 m0, {slot + 1024*i}")
                if which == 0: I(f"s_add_u32 s60, s{54+p}, {t*64 + i*20480 - 1024*(i&3)}")
                else: I(f"s_add_u32 s60, s54, {t*32*8192 + i*32768 - 1024*(i&3)}")
                I(f"buffer_load_dwordx4 v3, s[40:43], s60 offen offset:{1024*(i&3)} lds")
    for j in range(RING - 1): issue(j)
    I(f"s_waitcnt vmcnt({sum(cnt(k) for k in range(1, RING-1))})")
    for j in range(N):
        I("s_barrier")
        if j + 1 >= N: break
        issue(j + RING - 1)
        if cnt(j + 1) > 0:
            I(f"s_waitcnt vmcnt({sum(cnt(k) for k in range(j+2, j+RING))})")
    I("s_endpgm")

A.label("L1_ld0")
I("s_setprio 3")
I("s_cmp_eq_u32 s51, 0")
I("s_cselect_b32 s40, s16, s26"); I("s_cselect_b32 s41, s17, s27"); I("s_mov_b32 s42, 983040")
I("s_cselect_b32 s44, s18, s28"); I("s_cselect_b32 s45, s19, s29"); I("s_mov_b32 s46, 67108864")
I("s_mul_i32 s54, s49, 122880"); I("s_mul_i32 s55, s50, 122880")
I("v_lshrrev_b32 v1, 4, v0")
I("v_and_b32 v2, 3, v0"); I("v_xor_b32 v2, v2, v1"); I("v_lshlrev_b32 v2, 4, v2")
I("v_lshrrev_b32 v3, 2, v0"); I("v_mul_u32_u24 v3, 1280, v3"); I("v_add_u32 v3, v3, v2")
I("v_and_b32 v2, 15, v0"); I("v_xor_b32 v2, v2, v1"); I("v_lshlrev_b32 v2, 4, v2"); I("v_lshl_add_u32 v4, v1, 8, v2")
for j in range(1, 4): I(f"v_xor_b32 v{4+j}, {64*j}, v4")
loader(0)
A.label("L1_ld1")
I("s_setprio 3")
I("s_cmp_eq_u32 s51, 0")
I("s_cselect_b32 s40, s22, s32"); I("s_cselect_b32 s41, s23, s33"); I("s_mov_b32 s42, 5242880")
I("s_cselect_b32 s44, s20, s30"); I("s_cselect_b32 s45, s21, s31"); I("s_mov_b32 s46, 67108864")
I("s_lshl_b32 s54, s48, 8")
I("v_lshrrev_b32 v1, 4, v0")
I("v_lshlrev_b32 v2, 2, v1"); I("v_and_b32 v5, 15, v0"); I("v_xor_b32 v2, v2, v5"); I("v_lshlrev_b32 v2, 4, v2")
I("v_lshl_add_u32 v4, v1, 8, v2"); I("v_lshl_add_u32 v3, v1, 13, v2")
loader(1)
A.label("L1_end"); I("s_endpgm")

D = 7
A.raw(".globl oproj_kernel"); A.raw(".p2align 8"); A.raw(".type oproj_kernel,@function"); A.label("oproj_kernel")
k2 = []
e = k2.append
e("s_cmp_ge_u32 s2, 240"); e("s_cbranch_scc1 L2_end")
e("s_load_dwordx2 s[16:17], s[0:1], 32"); e("s_load_dwordx2 s[18:19], s[0:1], 72")
e("s_load_dwordx2 s[20:21], s[0:1], 80"); e("s_load_dwordx2 s[24:25], s[0:1], 96")
e("v_lshrrev_b32 v1, 6, v0"); e("v_and_b32 v0, 63, v0")
e("s_and_b32 s3, s2, 7"); e("v_readfirstlane_b32 s4, v1")
e("s_lshr_b32 s5, s2, 3")
e("s_mul_i32 s6, s5, 13"); e("s_lshr_b32 s6, s6, 6")
e("s_mul_i32 s7, s6, 5"); e("s_sub_u32 s7, s5, s7")
e("s_lshr_b32 s8, s3, 2")
e("s_lshr_b32 s9, s3, 1"); e("s_and_b32 s9, s9, 1"); e("s_mul_i32 s9, s9, 6"); e("s_add_u32 s6, s6, s9")
e("s_and_b32 s9, s3, 1"); e("s_mul_i32 s9, s9, 5"); e("s_add_u32 s7, s7, s9")
e("s_mul_i32 s10, s8, 24"); e("s_lshl_b32 s9, s6, 1"); e("s_add_u32 s10, s10, s9"); e("s_lshl_b32 s10, s10, 2"); e("s_add_u32 s10, s10, s4"); e("s_lshl_b32 s10, s10, 16")
e("s_mul_i32 s11, s4, 1310720"); e("s_lshl_b32 s9, s7, 7"); e("s_add_u32 s11, s11, s9")
e(f"s_mul_i32 s12, s4, {D*4096}")
e("s_mov_b32 s22, 1966080"); e("s_mov_b32 s23, 0x20000"); e("s_mov_b32 s26, 12582912"); e("s_mov_b32 s27, 0x20000")
e("s_mov_b32 s30, 5242880"); e("s_mov_b32 s31, 0x20000")
e("v_lshlrev_b32 v2, 4, v0")
e("v_lshrrev_b32 v4, 3, v0"); e("v_lshrrev_b32 v5, 2, v0"); e("v_and_b32 v5, 4, v5"); e("v_and_b32 v6, 7, v0"); e("v_xor_b32 v5, v5, v6")
e("v_mul_u32_u24 v3, 1280, v4"); e("v_lshl_add_u32 v3, v5, 4, v3")
e("v_lshrrev_b32 v4, 2, v0"); e("v_and_b32 v4, 3, v4")
e("v_lshrrev_b32 v5, 4, v0"); e("v_and_b32 v5, 1, v5"); e("v_lshlrev_b32 v5, 5, v5")
e("v_and_b32 v6, 1, v0"); e("v_lshl_add_u32 v5, v6, 4, v5"); e("v_and_b32 v6, 2, v0"); e("v_lshl_add_u32 v5, v6, 2, v5")
e("v_lshl_add_u32 v5, v4, 7, v5"); e("v_lshrrev_b32 v4, 1, v4"); e("v_lshl_add_u32 v5, v4, 6, v5")
e("v_lshrrev_b32 v6, 5, v0"); e("v_lshl_add_u32 v5, v6, 10, v5")
e("v_add_u32 v6, s12, v5"); e("v_xor_b32 v7, 64, v6")
e("s_waitcnt lgkmcnt(0)")
e("s_cmp_eq_u32 s8, 0"); e("s_cselect_b32 s28, s16, s18"); e("s_cselect_b32 s29, s17, s19")
ACC = 16; AF = [80, 96]; OF = 112
NCH = 32
def k2_issue(c):
    sl = c % D
    o = [f"s_add_u32 m0, s12, {sl*4096}"]
    for i in range(4):
        o.append(f"s_add_u32 s13, s11, {(32*c+8*i)*1280 - 1024*i}")
        o.append(f"buffer_load_dwordx4 v3, s[28:31], s13 offen offset:{1024*i} lds")
    for mb in range(2):
        o.append(f"s_add_u32 s13, s10, {mb*262144 + c*2048}")
        for s_ in range(2):
            o.append(f"buffer_load_dwordx4 {v(OF+sl*16+(mb*2+s_)*4,4)}, v2, s[24:27], s13 offen offset:{1024*s_}")
    return o
def k2_reads(c):
    sl = c % D; b = AF[c & 1]
    return [f"ds_read_b64_tr_b16 {v(b+(s_*2+w)*4+2*ee,2)}, v{6+w} offset:{sl*4096+2048*s_+512*ee}" for s_ in range(2) for w in range(2) for ee in range(2)]
def k2_mfmas(c):
    sl = c % D; b = AF[c & 1]
    return [mf(ACC+16*(mb*2+w), b+(s_*2+w)*4, OF+sl*16+(mb*2+s_)*4, "0" if (c == 0 and s_ == 0) else None) for s_ in range(2) for mb in range(2) for w in range(2)]
for c in range(D): k2 += k2_issue(c)
issued = D
k2.append(f"s_waitcnt vmcnt({8*(issued-1)})")
k2 += k2_reads(0)
for c in range(NCH):
    k2.append("s_waitcnt lgkmcnt(0)")
    gaps = {}
    if c + 1 < NCH:
        gaps[0] = [f"s_waitcnt vmcnt({8*(issued-(c+2))})"]
        spread(k2_reads(c+1), 0, 3, gaps)
    mm = k2_mfmas(c)
    k2 += interleave(mm, gaps)
    if issued < NCH:
        k2 += k2_issue(issued); issued += 1
k2.append("s_nop 7"); k2.append("s_nop 3")
k2.append("v_add_u32 v4, s12, v2")
for t in range(4):
    for q in range(4):
        k2.append(f"ds_write_b128 v4, {v(ACC+16*t+4*q,4)} offset:{t*4096+q*1024}")
k2.append("s_lshl_b32 s13, s4, 12"); k2.append("v_add_u32 v4, s13, v2")
k2.append("s_waitcnt lgkmcnt(0)"); k2.append("s_barrier")
for src in range(4):
    for q in range(4):
        off = src*D*4096 + q*1024
        if off > 65535:
            k2.append(f"ds_read_b128 {v(ACC+16*src+4*q,4)}, v5 offset:{off-65536+8192}")
        else:
            k2.append(f"ds_read_b128 {v(ACC+16*src+4*q,4)}, v4 offset:{off}")
    if src == 0: k2.append(f"v_add_u32 v5, {65536-8192}, v4")
k2.append("s_lshl_b32 s13, s6, 1"); k2.append("s_lshr_b32 s14, s4, 1"); k2.append("s_add_u32 s13, s13, s14"); k2.append("s_mul_i32 s13, s13, 81920")
k2.append("s_mul_i32 s14, s8, 1280"); k2.append("s_add_u32 s13, s13, s14"); k2.append("s_lshl_b32 s14, s7, 7"); k2.append("s_add_u32 s13, s13, s14")
k2.append("s_and_b32 s14, s4, 1"); k2.append("s_lshl_b32 s14, s14, 6"); k2.append("s_add_u32 s13, s13, s14")
k2.append("v_and_b32 v8, 31, v0"); k2.append("v_mul_u32_u24 v8, 2560, v8"); k2.append("v_lshrrev_b32 v9, 5, v0"); k2.append("v_lshl_add_u32 v8, v9, 4, v8")
k2.append("s_waitcnt lgkmcnt(0)")
for i in range(16):
    k2.append(f"v_add_f32 v{ACC+i}, v{ACC+i}, v{ACC+16+i}"); k2.append(f"v_add_f32 v{ACC+32+i}, v{ACC+32+i}, v{ACC+48+i}")
for i in range(16): k2.append(f"v_add_f32 v{ACC+i}, v{ACC+i}, v{ACC+32+i}")
for i in range(8): k2.append(f"v_cvt_pk_bf16_f32 v{80+i}, v{ACC+2*i}, v{ACC+2*i+1}")
k2.append("buffer_store_dwordx4 v[80:83], v8, s[20:23], s13 offen")
k2.append("buffer_store_dwordx4 v[84:87], v8, s[20:23], s13 offen offset:32")
k2.append("L2_end:"); k2.append("s_endpgm")
errs = check_hazards(k2, "K2")
for x in errs: print(x)
assert not errs
emit(k2)

A.raw('.section .rodata,"a"')
for name, nv in (("attn_kernel", 256), ("oproj_kernel", 224)):
    A.raw(".p2align 6")
    A.raw(f".amdhsa_kernel {name}")
    for l in (f"next_free_vgpr {nv}", "next_free_sgpr 80", f"accum_offset {nv}", "group_segment_fixed_size 0", "kernarg_size 104",
              "user_sgpr_count 2", "user_sgpr_kernarg_segment_ptr 1", "system_sgpr_workgroup_id_x 1", "float_denorm_mode_32 3"):
        A.raw("  .amdhsa_" + l)
    A.raw(".end_amdhsa_kernel")
open(out_path, "w").write(A.text())
```

```python
import sys, math, struct, os
from asmlib import *

NT = " nt" if "--nt" in sys.argv else ""
QNT = " nt" if "--qnt" in sys.argv else ""
OSC = " sc1" if "--osc1" in sys.argv else (" nt" if "--ont" in sys.argv else "")
NOCOMPUTE = "--nocompute" in sys.argv
K1ONLY = "--k1only" in sys.argv
K2ONLY = "--k2only" in sys.argv
out_path = [x for x in sys.argv[1:] if not x.startswith("--")][0]

def fbits(x): return "0x%08x" % struct.unpack("<I", struct.pack("<f", x))[0]
CSC = (128 ** -0.5) * math.log2(math.e)
THR = 8.0

A = Asm()
hdr = open("concat_heads__gqa_block_cached__mha_block_cached__near_ridge.s.ref").read().split("\n")
for l in hdr:
    if l.startswith(";") and "@launch" not in l and "Override" not in l and "grid=ceil" not in l: A.raw(l)
    elif not l.startswith(";"): break
if not K2ONLY: A.raw("; @launch kernel=attn_kernel grid=(256,1,1) block=(320,1,1) lds=131072")
if not K1ONLY: A.raw("; @launch kernel=oproj_kernel grid=(240,1,1) block=(256,1,1) lds=114688")
if "--k2twice" in sys.argv: A.raw("; @launch kernel=oproj_kernel grid=(240,1,1) block=(256,1,1) lds=114688")
NOO = "--k2noo" in sys.argv
NOWO = "--k2nowo" in sys.argv
K2NT = " nt" if "--k2nt" in sys.argv else ""
PER = 8 - 4*NOO - 4*NOWO
A.raw('.amdgcn_target "amdgcn-amd-amdhsa--gfx950"')
A.raw(".text")

NQ = 20
NSTEP = 54
RING = 8
AHEAD = int(os.environ.get("AHEAD", "7"))
VRING = 65536

A.raw(".globl attn_kernel"); A.raw(".p2align 8"); A.raw(".type attn_kernel,@function"); A.label("attn_kernel")
I = A.i
I("s_cmp_ge_u32 s2, 256"); I("s_cbranch_scc1 L1_end")
I("s_load_dwordx16 s[16:31], s[0:1], 0")
I("s_load_dwordx4 s[32:35], s[0:1], 64")
I("s_load_dwordx2 s[36:37], s[0:1], 96")
I("v_lshrrev_b32 v1, 6, v0")
I("v_and_b32 v0, 63, v0")
I("s_and_b32 s3, s2, 7")
I("v_readfirstlane_b32 s4, v1")
I("s_lshr_b32 s5, s2, 3")
I("s_and_b32 s51, s5, 1")
I("s_lshr_b32 s6, s5, 1"); I("s_and_b32 s6, s6, 3")
I("s_lshl_b32 s48, s3, 2"); I("s_add_u32 s48, s48, s6")
I("s_lshr_b32 s49, s5, 3")
I("s_add_u32 s50, s49, 4")
for p in range(2):
    I(f"s_lshl_b32 s{52+p}, s{49+p}, 5"); I(f"s_add_u32 s{52+p}, s{52+p}, s48"); I(f"s_lshl_b32 s{52+p}, s{52+p}, 18")
I("s_mov_b32 s43, 0x20000"); I("s_mov_b32 s47, 0x20000")
I("s_waitcnt lgkmcnt(0)")
I("s_cmp_eq_u32 s4, 3"); I("s_cbranch_scc1 L1_ld0")
I("s_cmp_eq_u32 s4, 4"); I("s_cbranch_scc1 L1_ld1")

Q=8; O=40; S=[104,120]; P=[136,144]; KF=152; VF=184; KST=216; VST=224; WST=228; XST=232; KA=234; VA=242
M=246; MT=247; L0=248; L1=249; F=250; T0=251; T1=252; VOFF=253
sC=54; sIC=55; sSlot=56; sFlag=57; sCnt=58; sPass=59; sOb=60; sOb2=61; sB=62

pro = []
e = pro.append
e("s_mov_b32 s40, s36"); e("s_mov_b32 s41, s37"); e("s_mov_b32 s42, 12582912")
e(f"s_mov_b32 s{sC}, {fbits(CSC)}"); e(f"s_mov_b32 s{sIC}, {fbits(1.0/CSC)}")
e(f"s_mov_b32 s{sSlot}, 0"); e(f"s_mov_b32 s{sFlag}, 0"); e(f"s_mov_b32 s{sPass}, 0"); e(f"s_mov_b32 s{sB}, s49")
e(f"v_lshlrev_b32 v{VOFF}, 4, v0")
e("v_and_b32 v1, 31, v0")
e("v_lshrrev_b32 v2, 5, v0")
e("v_and_b32 v3, 15, v1"); e("v_xor_b32 v3, v3, v2"); e("v_lshlrev_b32 v3, 4, v3")
e("v_lshl_add_u32 v3, v1, 8, v3")
for s_ in range(8): e(f"v_xor_b32 v{KST+s_}, {32*s_}, v3")
e("s_lshl_b32 s7, s4, 5"); e("v_add_u32 v4, s7, v1")
e("v_lshrrev_b32 v5, 2, v1"); e("v_and_b32 v5, 3, v5"); e("v_xor_b32 v5, v5, v2"); e("v_lshlrev_b32 v5, 4, v5")
e(f"v_lshl_add_u32 v{XST}, v4, 6, v5"); e(f"v_xor_b32 v{XST+1}, 32, v{XST}")
e("v_lshrrev_b32 v3, 2, v0"); e("v_and_b32 v3, 3, v3")
e("v_lshrrev_b32 v4, 4, v0"); e("v_and_b32 v4, 1, v4"); e("v_lshlrev_b32 v4, 5, v4")
e("v_and_b32 v5, 1, v0"); e("v_lshl_add_u32 v4, v5, 4, v4")
e("v_and_b32 v5, 2, v0"); e("v_lshl_add_u32 v4, v5, 2, v4")
e("v_lshl_add_u32 v4, v3, 8, v4")
e("v_lshl_add_u32 v4, v3, 6, v4")
e(f"v_add_u32 v4, {VRING}, v4")
e("v_lshl_add_u32 v5, v2, 10, v4")
e("v_lshl_add_u32 v6, v2, 11, v4")
for w in range(4):
    e(f"v_xor_b32 v{VST+w}, {64*w}, v5"); e(f"v_xor_b32 v{WST+w}, {64*w}, v6")

def addr_qp():
    o = [f"v_add_u32 v{KA+i}, s{sSlot}, v{XST+i}" for i in range(2)]
    o += [f"v_add_u32 v{VA+i}, s{sSlot}, v{WST+i}" for i in range(4)]
    return o
def addr_at():
    o = [f"v_add_u32 v{KA+i}, s{sSlot}, v{KST+i}" for i in range(8)]
    o += [f"v_add_u32 v{VA+i}, s{sSlot}, v{VST+i}" for i in range(4)]
    return o
def adv_slot():
    return [f"s_add_u32 s{sSlot}, s{sSlot}, 16384", f"s_and_b32 s{sSlot}, s{sSlot}, 0xffff"]
def mf(d, a_, b_, c=None):
    cc = v(d, 16) if c is None else c
    return f"v_mfma_f32_32x32x16_bf16 {v(d,16)}, {v(a_,4)}, {v(b_,4)}, {cc}"

def qp_reads(par):
    buf = VF if par else KF
    xb = S[par]
    so = 8192 * par
    o = [f"ds_read_b128 {v(xb+4*s_,4)}, v{KA+s_} offset:{so}" for s_ in range(2)]
    for s_ in range(2):
        for w in range(4):
            for ee in range(2):
                o.append(f"ds_read_b64_tr_b16 {v(buf+(s_*4+w)*4+2*ee,2)}, v{VA+w} offset:{so+4096*s_+1024*ee}")
    return o
def qp_mfmas(par, first=False):
    buf = VF if par else KF
    xb = S[par]
    return [mf(O+16*w, buf+(s_*4+w)*4, xb+4*s_, "0" if (first and s_ == 0) else None) for s_ in range(2) for w in range(4)]
def qp_step(par, do_mfma=True, first=False, tail=None):
    o = ["s_barrier"]
    rd = qp_reads(par)
    if do_mfma:
        mm = qp_mfmas(1 - par, first)
        gaps = {-1: rd[:4]}
        rest = rd[4:]
        for k in range(7): gaps[k] = rest[2*k:2*k+2]
        o += interleave(mm, gaps)
    else:
        o += rd
    if tail: o += tail
    o.append("s_waitcnt lgkmcnt(0)")
    return o

def k_reads(par): return [f"ds_read_b128 {v(KF+4*s_,4)}, v{KA+s_} offset:{8192*par}" for s_ in range(8)]
def v_reads(par, kb):
    return [f"ds_read_b64_tr_b16 {v(VF+(kb*4+w)*4+2*ee,2)}, v{VA+w} offset:{8192*par+4096*kb+2048*ee}" for w in range(4) for ee in range(2)]
def qk_mfmas(par): return [mf(S[par], KF+4*s_, Q+4*s_, "0" if s_ == 0 else None) for s_ in range(8)]
def pv_mfmas(par): return [mf(O+16*w, VF+(kb*4+w)*4, P[par]+4*kb) for kb in range(2) for w in range(4)]
def max_ops(sb):
    o = [f"v_max3_f32 v{T0}, v{sb}, v{sb+1}, v{sb+2}", f"v_max3_f32 v{T1}, v{sb+3}, v{sb+4}, v{sb+5}",
         f"v_max3_f32 v{T0}, v{T0}, v{sb+6}, v{sb+7}", f"v_max3_f32 v{T1}, v{T1}, v{sb+8}, v{sb+9}",
         f"v_max3_f32 v{T0}, v{T0}, v{sb+10}, v{sb+11}", f"v_max3_f32 v{T1}, v{T1}, v{sb+12}, v{sb+13}",
         f"v_max3_f32 v{T0}, v{T0}, v{sb+14}, v{sb+15}", f"v_max_f32 v{T0}, v{T0}, v{T1}"]
    return o
def sm_ops(sb, pb):
    o = []
    for i in range(16 + 3):
        if i < 16: o.append(f"v_fma_f32 v{sb+i}, v{sb+i}, s{sC}, -v{M}")
        if 0 <= i - 1 < 16: o.append(f"v_exp_f32 v{sb+i-1}, v{sb+i-1}")
        j = i - 3
        if 0 <= j < 16:
            o.append(f"v_add_f32 v{L0+(j&1)}, v{L0+(j&1)}, v{sb+j}")
            if j & 1: o.append(f"v_cvt_pk_bf16_f32 v{pb+(j>>1)}, v{sb+j-1}, v{sb+j}")
    return o
def newmax_ops(first):
    o = [f"v_mov_b32 v{T1}, v{T0}", "s_nop 1", f"v_permlane32_swap_b32 v{T0}, v{T1}", "s_nop 0",
         f"v_max_f32 v{T0}, v{T0}, v{T1}", f"v_mul_f32 v{T0}, s{sC}, v{T0}"]
    if first:
        o += [f"v_mov_b32 v{M}, v{T0}", f"v_mov_b32 v{L0}, 0", f"v_mov_b32 v{L1}, 0"]
    else:
        o += [f"v_max_f32 v{T0}, v{T0}, v{M}", f"v_sub_f32 v{F}, v{M}, v{T0}", f"v_exp_f32 v{F}, v{F}",
              f"v_mov_b32 v{M}, v{T0}", f"v_mul_f32 v{L0}, v{L0}, v{F}", f"v_mul_f32 v{L1}, v{L1}, v{F}",
              f"s_mov_b32 s{sFlag}, 1"]
    o += [f"v_add_f32 v{MT}, {fbits(THR)}, v{M}", f"v_mul_f32 v{MT}, s{sIC}, v{MT}"]
    return o

ool = []
site = [0]
def spread(ops, g0, g1, gaps):
    n = g1 - g0 + 1
    for k in range(n):
        lo = len(ops) * k // n; hi = len(ops) * (k + 1) // n
        gaps.setdefault(g0 + k, []).extend(ops[lo:hi])

def at_step(par, qk=True, pv=True, tail=None):
    n = site[0]; site[0] += 1
    o = ["s_barrier"]
    sb = S[1 - par]; pb = P[1 - par]
    mm = pv_mfmas(par) + (qk_mfmas(par) if qk else [])
    gaps = {-1: (k_reads(par) if qk else ["s_nop 7"])}
    mx = max_ops(sb)
    gaps[0] = mx[:4]; gaps[1] = mx[4:] + [f"v_cmp_gt_f32 vcc, v{T0}, v{MT}", f"s_cbranch_vccnz L1_rare{n}", f"L1_back{n}:"]
    ool.append([f"L1_rare{n}:"] + newmax_ops(False) + [f"s_branch L1_back{n}"])
    last = len(mm) - 1
    spread(sm_ops(sb, pb), 2, last, gaps)
    if qk:
        spread(v_reads(par, 0), 4, 7, gaps)
        gaps[7].append("s_waitcnt lgkmcnt(8)")
        spread(v_reads(par, 1), 8, 13, gaps)
    else:
        spread(v_reads(par, 0), 4, 6, gaps)
        gaps[7] = v_reads(par, 1) + gaps[7]
    o += interleave(mm, gaps)
    if tail: o += tail
    if not qk: o.append("s_nop 7")
    o += [f"s_cmp_lg_u32 s{sFlag}, 0", f"s_cbranch_scc1 L1_resc{n}", f"L1_rback{n}:"]
    ool.append([f"L1_resc{n}:"] + [f"v_mul_f32 v{O+i}, v{O+i}, v{F}" for i in range(64)] + [f"s_mov_b32 s{sFlag}, 0", f"s_branch L1_rback{n}"])
    o.append("s_waitcnt lgkmcnt(0)")
    return o

def at_step0():
    o = ["s_barrier"] + k_reads(0) + qp_mfmas(1) + ["s_nop 8"]
    for s_ in range(8):
        for t in range(4):
            src = O + 16 * (s_ >> 1) + 8 * (s_ & 1) + 2 * t
            o.append(f"v_cvt_pk_bf16_f32 v{Q+4*s_+t}, v{src}, v{src+1}")
    o += ["s_waitcnt lgkmcnt(0)", "s_nop 0"] + qk_mfmas(0)
    return o
def at_step1(tail):
    o = ["s_barrier"] + k_reads(1) + v_reads(1, 0)[:6]
    o += [f"v_mov_b32 v{O+i}, 0" for i in range(8)]
    o += ["s_waitcnt lgkmcnt(6)"]
    mm = qk_mfmas(1)
    gaps = {}
    ops = max_ops(S[0]) + newmax_ops(True) + sm_ops(S[0], P[0]) + [f"v_mov_b32 v{O+i}, 0" for i in range(8, 64)]
    spread(ops, 0, 7, gaps)
    gaps[0] = v_reads(1, 0)[6:] + gaps[0]
    gaps[1] = v_reads(1, 1)[:4] + gaps[1]
    gaps[2] = v_reads(1, 1)[4:] + gaps[2]
    o += interleave(mm, gaps) + tail + ["s_waitcnt lgkmcnt(0)"]
    return o
def at_last(tail):
    o = ["s_barrier"] + pv_mfmas(1)
    o += [f"v_add_f32 v{L0}, v{L0}, v{L1}", f"v_mov_b32 v{L1}, v{L0}", "s_nop 1", f"v_permlane32_swap_b32 v{L0}, v{L1}", "s_nop 0",
          f"v_add_f32 v{L0}, v{L0}, v{L1}", f"v_rcp_f32 v{L0}, v{L0}"]
    o += [f"s_mul_i32 s{sOb}, s51, 24", f"s_mul_i32 s{sOb2}, s{sB}, 3", f"s_add_u32 s{sOb}, s{sOb}, s{sOb2}", f"s_add_u32 s{sOb}, s{sOb}, s4",
          f"s_lshl_b32 s{sOb}, s{sOb}, 5", f"s_add_u32 s{sOb}, s{sOb}, s48", f"s_lshl_b32 s{sOb}, s{sOb}, 13", f"s_add_u32 s{sOb2}, s{sOb}, 4096", "s_nop 1"]
    for s_ in range(8):
        src = O + 16 * (s_ >> 1) + 8 * (s_ & 1)
        for t in range(8): o.append(f"v_mul_f32 v{src+t}, v{src+t}, v{L0}")
        for t in range(4): o.append(f"v_cvt_pk_bf16_f32 v{KF+4*s_+t}, v{src+2*t}, v{src+2*t+1}")
        o.append(f"buffer_store_dwordx4 {v(KF+4*s_,4)}, v{VOFF}, s[40:43], s{sOb if s_<4 else sOb2} offen offset:{1024*(s_&3)}{OSC}")
    o += tail
    return o

def emit(lst):
    for x in lst:
        if x.endswith(":"): A.raw(x)
        else: I(x)

if NOCOMPUTE:
    I(f"s_mov_b32 s{sCnt}, {2*NSTEP - (40 if '--noq' in sys.argv else 20 if '--noq2' in sys.argv else 0)}")
    A.label("L1_nc"); I("s_barrier"); I(f"s_sub_u32 s{sCnt}, s{sCnt}, 1"); I(f"s_cmp_lg_u32 s{sCnt}, 0"); I("s_cbranch_scc1 L1_nc")
    I("s_endpgm")
else:
    pro += addr_qp()
    emit(pro)
    ST = "--stamp" in sys.argv
    if "--pf" in sys.argv:
        if ST: I("s_memtime s[82:83]")
        I("s_cmp_eq_u32 s51, 0")
        I("s_cselect_b32 s44, s22, s32"); I("s_cselect_b32 s45, s23, s33"); I("s_mov_b32 s46, 5242880")
        I("s_cselect_b32 s84, s16, s26"); I("s_cselect_b32 s85, s17, s27"); I("s_mov_b32 s86, 983040"); I("s_mov_b32 s87, 0x20000")
        I("s_cmp_eq_u32 s4, 2"); I("s_cbranch_scc1 L1_pfx")
        I("s_mul_i32 s7, s49, 160"); I("s_mul_i32 s8, s4, 80"); I("s_add_u32 s7, s7, s8"); I("s_lshl_b32 s7, s7, 13"); I("s_lshl_b32 s8, s48, 8"); I("s_add_u32 s7, s7, s8")
        I("v_lshrrev_b32 v8, 4, v0"); I("v_lshlrev_b32 v8, 13, v8"); I("v_and_b32 v9, 15, v0"); I("v_lshl_add_u32 v8, v9, 4, v8")
        for j in range(20):
            I(f"buffer_load_dwordx4 v[{12+4*j}:{15+4*j}], v8, s[44:47], s7 offen{QNT}"); I("s_add_u32 s7, s7, 32768")
        I("s_branch L1_pfd")
        A.label("L1_pfx")
        I("s_mul_i32 s7, s49, 122880"); I("s_mul_i32 s8, s6, 30720"); I("s_add_u32 s7, s7, s8")
        for j in range(30):
            I(f"buffer_load_dwordx4 v[{12+4*j}:{15+4*j}], v{VOFF}, s[84:87], s7 offen{QNT}"); I("s_add_u32 s7, s7, 1024")
        A.label("L1_pfd")
        if "--pfwait" in sys.argv: I("s_waitcnt vmcnt(0)"); I("s_barrier")
    if ST: I("s_memrealtime s[76:77]")
    A.label("L1_head")
    if ST: I("s_mov_b64 s[70:71], s[64:65]"); I("s_mov_b64 s[72:73], s[66:67]"); I("s_mov_b64 s[74:75], s[68:69]"); I("s_memtime s[64:65]"); I("s_waitcnt lgkmcnt(0)")
    q0 = qp_step(0, do_mfma=False)
    q1 = qp_step(1, first=True, tail=adv_slot() + addr_qp())
    qa = qp_step(0)
    qb = qp_step(1, tail=adv_slot() + addr_qp())
    emit(q0); emit(q1)
    I(f"s_mov_b32 s{sCnt}, 9")
    A.label("L1_qloop")
    emit(qa); emit(qb)
    I(f"s_sub_u32 s{sCnt}, s{sCnt}, 1"); I(f"s_cmp_lg_u32 s{sCnt}, 0"); I("s_cbranch_scc1 L1_qloop")
    if ST: I("s_memtime s[66:67]"); I("s_waitcnt lgkmcnt(0)")
    aa = addr_at()
    emit(aa)
    a0 = at_step0(); a1 = at_step1(adv_slot() + addr_at())
    emit(a0); emit(a1)
    I(f"s_mov_b32 s{sCnt}, 15")
    A.label("L1_aloop")
    ae = at_step(0); ao = at_step(1, tail=adv_slot() + addr_at())
    emit(ae); emit(ao)
    I(f"s_sub_u32 s{sCnt}, s{sCnt}, 1"); I(f"s_cmp_lg_u32 s{sCnt}, 0"); I("s_cbranch_scc1 L1_aloop")
    if ST: I("s_memtime s[68:69]"); I("s_waitcnt lgkmcnt(0)")
    a32 = at_step(0, qk=False)
    a33 = at_last(adv_slot() + addr_qp())
    emit(a32); emit(a33)
    I(f"s_mov_b32 s{sB}, s50")
    I(f"s_add_u32 s{sPass}, s{sPass}, 1"); I(f"s_cmp_lt_u32 s{sPass}, 2"); I("s_cbranch_scc1 L1_head")
    if ST:
        I("s_memtime s[78:79]"); I("s_memrealtime s[80:81]"); I("s_load_dwordx2 s[44:45], s[0:1], 88"); I("s_mov_b32 s46, 256"); I("s_waitcnt lgkmcnt(0)")
        I("s_cmp_lg_u32 s4, 0"); I("s_cbranch_scc1 L1_end"); I("s_and_b32 s5, s2, 0x7f"); I("s_cmp_lg_u32 s5, 5"); I("s_cbranch_scc1 L1_end")
        I("s_lshr_b32 s5, s2, 7"); I("s_lshl_b32 s5, s5, 6")
        for k, (x, y) in enumerate([(72,70),(74,72),(64,74),(66,64),(68,66),(78,68),(78,70),(80,76),(70,82)]):
            I(f"s_sub_u32 s6, s{x}, s{y}"); I("v_mov_b32 v1, s6"); I("v_mov_b32 v2, 0"); I(f"buffer_store_dword v1, v2, s[44:47], s5 offen offset:{4*k}")
    I("s_endpgm")
    for blk in ool: emit(blk)
    trace = pro + q0 + q1 + qa + qb + qa + qb + aa + a0 + a1 + ae + ao + ae + ao + a32 + a33 + q0 + q1
    errs = check_hazards(trace, "K1")
    def with_ool(step):
        t = []
        for x in step:
            t.append(x)
            if x.startswith("s_cbranch") and ("L1_rare" in x or "L1_resc" in x):
                lab = x.split()[1] + ":"
                t += [b for b in ool if b[0] == lab][0]
        return t
    errs += check_hazards(a1 + with_ool(ae) + with_ool(ao) + with_ool(ae) + with_ool(ao) + with_ool(a32) + a33, "K1rare")
    for x in errs: print(x)
    assert not errs

def loader(which):
    items = []
    for p in range(2):
        for t in range(NQ):
            if ("--noq" in sys.argv) or ("--noq2" in sys.argv and p == 1): continue
            items.append(("q", p, t))
        if which == 0:
            for t in range(32): items.append(("kv", p, t))
            items += [None, None]
        else:
            items.append(None)
            for t in range(32): items.append(("kv", p, t))
            items.append(None)
    N = len(items)
    def cnt(j):
        if j >= N or items[j] is None: return 0
        if "--noqload" in sys.argv and items[j][0] == "q": return 0
        return 6 if (which == 0 and items[j][0] == "q") else 8
    ringbase = 0 if which == 0 else VRING
    def issue(j):
        if cnt(j) == 0: return
        if "--noload" in sys.argv: return
        if "--noqload" in sys.argv and items[j][0] == "q": return
        kind, p, t = items[j]
        slot = ringbase + (j % RING) * 8192
        if kind == "kv":
            for half in range(2):
                I(f"s_mov_b32 m0, {slot + 4096*half}")
                I(f"s_add_u32 s60, s{52+p}, {t*8192 + 4096*half}")
                for i in range(4):
                    vo = 4 + i if which == 0 else 4
                    I(f"buffer_load_dwordx4 v{vo}, s[44:47], s60 offen offset:{1024*i}{NT} lds")
        else:
            n = cnt(j)
            for i in range(n):
                if i % 4 == 0: I(f"s_mov_b32 m0, {slot + 1024*i}")
                if which == 0: I(f"s_add_u32 s60, s{54+p}, {t*64 + i*20480 - 1024*(i&3)}")
                else: I(f"s_add_u32 s60, s54, {t*32*8192 + i*32768 - 1024*(i&3)}")
                I(f"buffer_load_dwordx4 v3, s[40:43], s60 offen offset:{1024*(i&3)}{QNT} lds")
    if "--pfwait" in sys.argv: I("s_barrier")
    for j in range(AHEAD): issue(j)
    I(f"s_waitcnt vmcnt({sum(cnt(k) for k in range(1, AHEAD))})")
    for j in range(N):
        I("s_barrier")
        if j + 1 >= N: break
        issue(j + AHEAD)
        if cnt(j + 1) > 0:
            I(f"s_waitcnt vmcnt({sum(cnt(k) for k in range(j+2, j+AHEAD+1))})")
    I("s_endpgm")

A.label("L1_ld0")
I("s_setprio 3")
I("s_cmp_eq_u32 s51, 0")
I("s_cselect_b32 s40, s16, s26"); I("s_cselect_b32 s41, s17, s27"); I("s_mov_b32 s42, 983040")
I("s_cselect_b32 s44, s18, s28"); I("s_cselect_b32 s45, s19, s29"); I("s_mov_b32 s46, 67108864")
I("s_mul_i32 s54, s49, 122880"); I("s_mul_i32 s55, s50, 122880")
I("v_lshrrev_b32 v1, 4, v0")
I("v_and_b32 v2, 3, v0"); I("v_xor_b32 v2, v2, v1"); I("v_lshlrev_b32 v2, 4, v2")
I("v_lshrrev_b32 v3, 2, v0"); I("v_mul_u32_u24 v3, 1280, v3"); I("v_add_u32 v3, v3, v2")
I("v_and_b32 v2, 15, v0"); I("v_xor_b32 v2, v2, v1"); I("v_lshlrev_b32 v2, 4, v2"); I("v_lshl_add_u32 v4, v1, 8, v2")
for j in range(1, 4): I(f"v_xor_b32 v{4+j}, {64*j}, v4")
loader(0)
A.label("L1_ld1")
I("s_setprio 3")
I("s_cmp_eq_u32 s51, 0")
I("s_cselect_b32 s40, s22, s32"); I("s_cselect_b32 s41, s23, s33"); I("s_mov_b32 s42, 5242880")
I("s_cselect_b32 s44, s20, s30"); I("s_cselect_b32 s45, s21, s31"); I("s_mov_b32 s46, 67108864")
I("s_lshl_b32 s54, s48, 8")
I("v_lshrrev_b32 v1, 4, v0")
I("v_lshlrev_b32 v2, 2, v1"); I("v_and_b32 v5, 15, v0"); I("v_xor_b32 v2, v2, v5"); I("v_lshlrev_b32 v2, 4, v2")
I("v_lshl_add_u32 v4, v1, 8, v2"); I("v_lshl_add_u32 v3, v1, 13, v2")
loader(1)
A.label("L1_end"); I("s_endpgm")

D = 7
A.raw(".globl oproj_kernel"); A.raw(".p2align 8"); A.raw(".type oproj_kernel,@function"); A.label("oproj_kernel")
k2 = []
e = k2.append
e("s_cmp_ge_u32 s2, 240"); e("s_cbranch_scc1 L2_end")
e("s_load_dwordx2 s[16:17], s[0:1], 32"); e("s_load_dwordx2 s[18:19], s[0:1], 72")
e("s_load_dwordx2 s[20:21], s[0:1], 80"); e("s_load_dwordx2 s[24:25], s[0:1], 96")
e("v_lshrrev_b32 v1, 6, v0"); e("v_and_b32 v0, 63, v0")
e("s_and_b32 s3, s2, 7"); e("v_readfirstlane_b32 s4, v1")
e("s_lshr_b32 s5, s2, 3")
e("s_mul_i32 s6, s5, 13"); e("s_lshr_b32 s6, s6, 6")
e("s_mul_i32 s7, s6, 5"); e("s_sub_u32 s7, s5, s7")
e("s_lshr_b32 s8, s3, 2")
e("s_lshr_b32 s9, s3, 1"); e("s_and_b32 s9, s9, 1"); e("s_mul_i32 s9, s9, 6"); e("s_add_u32 s6, s6, s9")
e("s_and_b32 s9, s3, 1"); e("s_mul_i32 s9, s9, 5"); e("s_add_u32 s7, s7, s9")
e("s_mul_i32 s10, s8, 24"); e("s_lshl_b32 s9, s6, 1"); e("s_add_u32 s10, s10, s9"); e("s_lshl_b32 s10, s10, 2"); e("s_add_u32 s10, s10, s4"); e("s_lshl_b32 s10, s10, 16")
e("s_mul_i32 s11, s4, 1310720"); e("s_lshl_b32 s9, s7, 7"); e("s_add_u32 s11, s11, s9")
e(f"s_mul_i32 s12, s4, {D*4096}")
e("s_mov_b32 s22, 1966080"); e("s_mov_b32 s23, 0x20000"); e("s_mov_b32 s26, 12582912"); e("s_mov_b32 s27, 0x20000")
e("s_mov_b32 s30, 5242880"); e("s_mov_b32 s31, 0x20000")
e("v_lshlrev_b32 v2, 4, v0")
e("v_lshrrev_b32 v4, 3, v0"); e("v_lshrrev_b32 v5, 2, v0"); e("v_and_b32 v5, 4, v5"); e("v_and_b32 v6, 7, v0"); e("v_xor_b32 v5, v5, v6")
e("v_mul_u32_u24 v3, 1280, v4"); e("v_lshl_add_u32 v3, v5, 4, v3")
e("v_lshrrev_b32 v4, 2, v0"); e("v_and_b32 v4, 3, v4")
e("v_lshrrev_b32 v5, 4, v0"); e("v_and_b32 v5, 1, v5"); e("v_lshlrev_b32 v5, 5, v5")
e("v_and_b32 v6, 1, v0"); e("v_lshl_add_u32 v5, v6, 4, v5"); e("v_and_b32 v6, 2, v0"); e("v_lshl_add_u32 v5, v6, 2, v5")
e("v_lshl_add_u32 v5, v4, 7, v5"); e("v_lshrrev_b32 v4, 1, v4"); e("v_lshl_add_u32 v5, v4, 6, v5")
e("v_lshrrev_b32 v6, 5, v0"); e("v_lshl_add_u32 v5, v6, 10, v5")
e("v_add_u32 v6, s12, v5"); e("v_xor_b32 v7, 64, v6")
e("s_waitcnt lgkmcnt(0)")
e("s_cmp_eq_u32 s8, 0"); e("s_cselect_b32 s28, s16, s18"); e("s_cselect_b32 s29, s17, s19")
ACC = 16; AF = [80, 96]; OF = 112
NCH = 32
def k2_issue(c):
    sl = c % D
    o = [f"s_add_u32 m0, s12, {sl*4096}"]
    for i in range(4):
        o.append(f"s_add_u32 s13, s11, {(32*c+8*i)*1280 - 1024*i}")
        if not NOWO: o.append(f"buffer_load_dwordx4 v3, s[28:31], s13 offen offset:{1024*i}{K2NT} lds")
    for mb in range(2):
        o.append(f"s_add_u32 s13, s10, {mb*262144 + c*2048}")
        for s_ in range(2):
            if not NOO: o.append(f"buffer_load_dwordx4 {v(OF+sl*16+(mb*2+s_)*4,4)}, v2, s[24:27], s13 offen offset:{1024*s_}{K2NT}")
    return o
def k2_reads(c):
    sl = c % D; b = AF[c & 1]
    return [f"ds_read_b64_tr_b16 {v(b+(s_*2+w)*4+2*ee,2)}, v{6+w} offset:{sl*4096+2048*s_+512*ee}" for s_ in range(2) for w in range(2) for ee in range(2)]
def k2_mfmas(c):
    sl = c % D; b = AF[c & 1]
    return [mf(ACC+16*(mb*2+w), b+(s_*2+w)*4, OF+sl*16+(mb*2+s_)*4, "0" if (c == 0 and s_ == 0) else None) for s_ in range(2) for mb in range(2) for w in range(2)]
for c in range(D): k2 += k2_issue(c)
issued = D
k2.append(f"s_waitcnt vmcnt({PER*(issued-1)})")
k2 += k2_reads(0)
for c in range(NCH):
    k2.append("s_waitcnt lgkmcnt(0)")
    gaps = {}
    if c + 1 < NCH:
        gaps[0] = [f"s_waitcnt vmcnt({PER*(issued-(c+2))})"]
        spread(k2_reads(c+1), 0, 3, gaps)
    mm = k2_mfmas(c)
    k2 += interleave(mm, gaps)
    if issued < NCH:
        k2 += k2_issue(issued); issued += 1
k2.append("s_nop 7"); k2.append("s_nop 3")
k2.append("v_add_u32 v4, s12, v2")
for t in range(4):
    for q in range(4):
        k2.append(f"ds_write_b128 v4, {v(ACC+16*t+4*q,4)} offset:{t*4096+q*1024}")
k2.append("s_lshl_b32 s13, s4, 12"); k2.append("v_add_u32 v4, s13, v2")
k2.append("s_waitcnt lgkmcnt(0)"); k2.append("s_barrier")
for src in range(4):
    for q in range(4):
        off = src*D*4096 + q*1024
        if off > 65535:
            k2.append(f"ds_read_b128 {v(ACC+16*src+4*q,4)}, v5 offset:{off-65536+8192}")
        else:
            k2.append(f"ds_read_b128 {v(ACC+16*src+4*q,4)}, v4 offset:{off}")
    if src == 0: k2.append(f"v_add_u32 v5, {65536-8192}, v4")
k2.append("s_lshl_b32 s13, s6, 1"); k2.append("s_lshr_b32 s14, s4, 1"); k2.append("s_add_u32 s13, s13, s14"); k2.append("s_mul_i32 s13, s13, 81920")
k2.append("s_mul_i32 s14, s8, 1280"); k2.append("s_add_u32 s13, s13, s14"); k2.append("s_lshl_b32 s14, s7, 7"); k2.append("s_add_u32 s13, s13, s14")
k2.append("s_and_b32 s14, s4, 1"); k2.append("s_lshl_b32 s14, s14, 6"); k2.append("s_add_u32 s13, s13, s14")
k2.append("v_and_b32 v8, 31, v0"); k2.append("v_mul_u32_u24 v8, 2560, v8"); k2.append("v_lshrrev_b32 v9, 5, v0"); k2.append("v_lshl_add_u32 v8, v9, 4, v8")
k2.append("s_waitcnt lgkmcnt(0)")
for i in range(16):
    k2.append(f"v_add_f32 v{ACC+i}, v{ACC+i}, v{ACC+16+i}"); k2.append(f"v_add_f32 v{ACC+32+i}, v{ACC+32+i}, v{ACC+48+i}")
for i in range(16): k2.append(f"v_add_f32 v{ACC+i}, v{ACC+i}, v{ACC+32+i}")
for i in range(8): k2.append(f"v_cvt_pk_bf16_f32 v{80+i}, v{ACC+2*i}, v{ACC+2*i+1}")
k2.append("buffer_store_dwordx4 v[80:83], v8, s[20:23], s13 offen")
k2.append("buffer_store_dwordx4 v[84:87], v8, s[20:23], s13 offen offset:32")
k2.append("L2_end:"); k2.append("s_endpgm")
errs = check_hazards(k2, "K2")
for x in errs: print(x)
assert not errs
emit(k2)

A.raw('.section .rodata,"a"')
for name, nv in (("attn_kernel", 256), ("oproj_kernel", 224)):
    A.raw(".p2align 6")
    A.raw(f".amdhsa_kernel {name}")
    for l in (f"next_free_vgpr {nv}", "next_free_sgpr 96", f"accum_offset {nv}", "group_segment_fixed_size 0", "kernarg_size 104",
              "user_sgpr_count 2", "user_sgpr_kernarg_segment_ptr 1", "system_sgpr_workgroup_id_x 1", "float_denorm_mode_32 3"):
        A.raw("  .amdhsa_" + l)
    A.raw(".end_amdhsa_kernel")
open(out_path, "w").write(A.text())
```

```python
import sys, math, struct, os
from asmlib import *

ARGS = sys.argv[1:]
def flag(x): return ("--" + x) in ARGS
def env(x, d): return int(os.environ.get(x, str(d)))
out_path = [x for x in ARGS if not x.startswith("--")][0]
NAME = "concat_heads__gqa_block_cached__mha_block_cached__near_ridge_kernel"
ST = flag("stamp")

def fbits(x): return "0x%08x" % struct.unpack("<I", struct.pack("<f", x))[0]
CSC = (128 ** -0.5) * math.log2(math.e)
LTHR = float(2 ** env("LTHR", 20))

A = Asm()
hdr = open("concat_heads__gqa_block_cached__mha_block_cached__near_ridge.s.ref").read().split("\n")
for l in hdr:
    if l.startswith("; @launch"): A.raw("; @launch grid=(256,1,1) block=(512,1,1) lds=163840")
    elif l.startswith(";"): A.raw(l)
    else: break
A.raw('.amdgcn_target "amdgcn-amd-amdhsa--gfx950"')
A.raw(".text")
A.raw(f".globl {NAME}"); A.raw(".p2align 8"); A.raw(f".type {NAME},@function"); A.label(NAME)
I = A.i
def emit(lst):
    for x in lst:
        if x.endswith(":"): A.raw(x)
        else: I(x)

KRING = 0; VRING = 32768; GA = 65536; HAND = GA + 2 * 16384; REG = 20480
FLAGB = 12582912; WSN = FLAGB + 1536 * 128
NQ = 20; NA = 34
sWave = 4; sBr = 5; sB = 6; sH = 7; sMt = 8; sNt = 9; sI = 10; sReg = 11
rX = 44; rW = 48; rK = 52; rV = 56; rWO = 60; rWS = 64; rOUT = 68; rDBG = 72
sNonce = 76; sT0 = 77; sT1 = 78; sCnt = 79; sPass = 80; sThr = 81; sKV = 82; sXb = 84; sWb = 85; sOb = 86; sOb2 = 87
sWOb = 88; sOI = 89; sSpin = 90; sHc = 91
def srd(r): return f"s[{r}:{r+3}]"

I("s_cmp_ge_u32 s2, 256"); I("s_cbranch_scc1 L_end")
I("s_load_dwordx16 s[16:31], s[0:1], 0")
I("s_load_dwordx8 s[32:39], s[0:1], 64")
I("s_load_dwordx2 s[40:41], s[0:1], 96")
if ST: I("s_memrealtime s[92:93]")
I("v_lshrrev_b32 v1, 6, v0")
I("v_and_b32 v0, 63, v0")
I("s_and_b32 s3, s2, 7")
I(f"v_readfirstlane_b32 s{sWave}, v1")
I(f"s_lshr_b32 s{sI}, s2, 3")
I(f"s_and_b32 s{sBr}, s3, 1")
I("s_lshr_b32 s3, s3, 1")
I(f"s_lshr_b32 s{sB}, s{sI}, 2")
I(f"s_and_b32 s{sH}, s{sI}, 3"); I(f"s_lshl_b32 s12, s3, 2"); I(f"s_add_u32 s{sH}, s{sH}, s12")
I(f"s_mul_i32 s12, s{sI}, 26"); I("s_lshr_b32 s12, s12, 8")
I(f"s_mul_i32 s13, s12, 10"); I(f"s_sub_u32 s{sNt}, s{sI}, s13")
I(f"s_mul_i32 s{sMt}, s3, 3"); I(f"s_add_u32 s{sMt}, s{sMt}, s12")
I(f"s_mul_i32 s{sReg}, s{sWave}, {REG}")
I("v_lshlrev_b32 v1, 4, v0")
for r, n in ((rX, 983040), (rW, 5242880), (rK, 67108864), (rV, 67108864), (rWO, 5242880), (rWS, WSN), (rOUT, 1966080), (rDBG, 256)):
    I(f"s_mov_b32 s{r+2}, {n}"); I(f"s_mov_b32 s{r+3}, 0x20000")
I(f"s_mul_i32 s{sOI}, s{sBr}, 12"); I(f"s_add_u32 s{sOI}, s{sOI}, s{sMt}"); I(f"s_lshl_b32 s{sOI}, s{sOI}, 19")
I(f"s_lshl_b32 s{sWOb}, s{sNt}, 7")
I("s_waitcnt lgkmcnt(0)")
I(f"s_cmp_eq_u32 s{sBr}, 0")
for r, a_, b_ in ((rX, 16, 26), (rK, 18, 28), (rV, 20, 30), (rW, 22, 32), (rWO, 24, 34)):
    I(f"s_cselect_b32 s{r}, s{a_}, s{b_}"); I(f"s_cselect_b32 s{r+1}, s{a_+1}, s{b_+1}")
for r, a_ in ((rOUT, 36), (rDBG, 38), (rWS, 40)):
    I(f"s_mov_b32 s{r}, s{a_}"); I(f"s_mov_b32 s{r+1}, s{a_+1}")
I(f"s_cmp_eq_u32 s{sWave}, 3"); I("s_cbranch_scc1 L_ld")
I(f"s_cmp_gt_u32 s{sWave}, 3"); I("s_cbranch_scc1 L_g")

def mf(d, a_, b_, c=None):
    cc = v(d, 16) if c is None else c
    return f"v_mfma_f32_32x32x16_bf16 {v(d,16)}, {v(a_,4)}, {v(b_,4)}, {cc}"
def spread(ops, g0, g1, gaps):
    n = g1 - g0 + 1
    for k in range(n):
        lo = len(ops) * k // n; hi = len(ops) * (k + 1) // n
        gaps.setdefault(g0 + k, []).extend(ops[lo:hi])
class VM:
    def __init__(self): self.q = []
    def issue(self, tag, n=1): self.q += [tag] * n
    def wait(self, tag):
        idx = max(i for i, t in enumerate(self.q) if t == tag)
        n = len(self.q) - 1 - idx
        assert n <= 63, n
        self.q = self.q[idx + 1:]
        return f"s_waitcnt vmcnt({n})"
    def has(self, tag): return tag in self.q
    def drain(self): self.q = []
stampn = [0]
def stamp(k):
    if not ST: return []
    stampn[0] += 1
    lab = f"L_st{stampn[0]}"
    return ["s_cmp_lg_u32 s2, 5", f"s_cbranch_scc1 {lab}", "s_memrealtime s[94:95]", "s_waitcnt lgkmcnt(0)", "s_sub_u32 s94, s94, s92",
            "v_mov_b32 v6, s94", "v_mov_b32 v7, 0", f"s_lshl_b32 s95, s{sWave}, 5", f"buffer_store_dword v6, v7, {srd(rDBG)}, s95 offen offset:{4*k}", "s_waitcnt vmcnt(0)", f"{lab}:"]

ACC = 8; FB = [72, 88, 104]; OB = 120
vWD = 2; vTR = [3, 4]; vPOLL = 5
def tail_addr_setup():
    o = []
    e = o.append
    e("v_lshrrev_b32 v6, 3, v0"); e("v_lshrrev_b32 v7, 2, v0"); e("v_and_b32 v7, 4, v7"); e(f"v_and_b32 v{vWD}, 7, v0"); e(f"v_xor_b32 v7, v7, v{vWD}")
    e(f"v_mul_u32_u24 v{vWD}, 1280, v6"); e(f"v_lshl_add_u32 v{vWD}, v7, 4, v{vWD}")
    e("v_lshrrev_b32 v6, 2, v0"); e("v_and_b32 v6, 3, v6")
    e("v_lshrrev_b32 v3, 4, v0"); e("v_and_b32 v3, 1, v3"); e("v_lshlrev_b32 v3, 5, v3")
    e("v_and_b32 v7, 1, v0"); e("v_lshl_add_u32 v3, v7, 4, v3"); e("v_and_b32 v7, 2, v0"); e("v_lshl_add_u32 v3, v7, 2, v3")
    e("v_lshl_add_u32 v3, v6, 7, v3"); e("v_lshrrev_b32 v6, 1, v6"); e("v_lshl_add_u32 v3, v6, 6, v3")
    e("v_lshrrev_b32 v7, 5, v0"); e("v_lshl_add_u32 v3, v7, 10, v3")
    e(f"v_add_u32 v3, s{sReg}, v3"); e("v_xor_b32 v4, 64, v3")
    return o
def wo_dma(sbase, krow, m0):
    o = [f"s_add_u32 m0, s{sReg}, {m0[1]}" if m0[0] == 's' else f"s_mov_b32 m0, {m0[1]}"]
    for i in range(4):
        o.append(f"s_add_u32 s{sT0}, s{sbase}, {(krow + 8*i)*1280 - 1024*i}")
        o.append(f"buffer_load_dwordx4 v{vWD}, {srd(rWO)}, s{sT0} offen offset:{1024*i} lds")
    return o
def o_loads(sbase, c, buf):
    o = []
    for mb in range(2):
        o.append(f"s_add_u32 s{sT0}, s{sbase}, {mb*262144 + c*2048}")
        for s_ in range(2):
            o.append(f"buffer_load_dwordx4 {v(OB+buf*16+(mb*2+s_)*4,4)}, v1, {srd(rWS)}, s{sT0} offen offset:{1024*s_} sc1")
    return o
def f_reads(slot, fb):
    b = FB[fb]
    return [f"ds_read_b64_tr_b16 {v(b+(s_*2+w)*4+2*ee,2)}, v{vTR[w]} offset:{slot*4096+2048*s_+512*ee}" for s_ in range(2) for w in range(2) for ee in range(2)]
def o_mfmas(fb, buf, first=False):
    b = FB[fb]
    return [mf(ACC+16*(mb*2+w), b+(s_*2+w)*4, OB+buf*16+(mb*2+s_)*4, "0" if (first and s_ == 0) else None) for s_ in range(2) for mb in range(2) for w in range(2)]
polln = [0]
def poll():
    polln[0] += 1
    n = polln[0]
    return [f"s_mov_b32 s{sSpin}, 200000", f"L_poll{n}:",
            f"buffer_load_dword v6, v{vPOLL}, {srd(rWS)}, 0 offen sc1", f"s_sub_u32 s{sSpin}, s{sSpin}, 1", "s_waitcnt vmcnt(0)",
            f"v_cmp_ne_u32 vcc, s{sNonce}, v6", f"s_cbranch_vccz L_pd{n}", f"s_cmp_lg_u32 s{sSpin}, 0", f"s_cbranch_scc1 L_poll{n}", f"L_pd{n}:"]
def poll_addr(nh_mask, sHead0):
    return [f"s_lshr_b32 s{sT0}, s{sOI}, 6", f"s_lshl_b32 s{sT1}, s{sHead0}, 7", f"s_add_u32 s{sT0}, s{sT0}, s{sT1}", f"s_add_u32 s{sT0}, s{sT0}, {FLAGB}",
            f"v_and_b32 v{vPOLL}, 1, v0", f"v_lshlrev_b32 v{vPOLL}, 12, v{vPOLL}", "v_lshrrev_b32 v6, 1, v0", f"v_and_b32 v6, {nh_mask}, v6",
            f"v_lshl_add_u32 v{vPOLL}, v6, 7, v{vPOLL}", f"v_add_u32 v{vPOLL}, s{sT0}, v{vPOLL}"]
def tail_bases():
    return [f"s_mul_i32 s{sWb}, s{sWave}, {256*1280}", f"s_add_u32 s{sWb}, s{sWb}, s{sWOb}", f"s_add_u32 s{sWb}, s{sWb}, {2048*1280}",
            f"s_lshl_b32 s{sXb}, s{sWave}, 14", f"s_add_u32 s{sXb}, s{sXb}, s{sOI}", f"s_add_u32 s{sXb}, s{sXb}, {128*1024}",
            f"s_lshl_b32 s{sHc}, s{sWave}, 1", f"s_add_u32 s{sHc}, s{sHc}, 16"] + poll_addr(1, sHc)
def tail_pre_reads():
    return f_reads(0, 0) + f_reads(1, 1)[:7] + ["s_waitcnt lgkmcnt(7)"] + f_reads(1, 1)[7:] + f_reads(2, 2)[:7] + ["s_waitcnt lgkmcnt(7)"] + f_reads(2, 2)[7:] + ["s_waitcnt lgkmcnt(0)"]
def tail_refill():
    return wo_dma(sWb, 160, ('s', 0)) + wo_dma(sWb, 192, ('s', 4096)) + wo_dma(sWb, 224, ('s', 8192))
def zero_acc(): return [f"v_mov_b32 v{ACC+i}, 0" for i in range(64)]

Q=8; O=40; S=[104,120]; P=[136,144]; KF=152; VF=184; NEGM=216; KST=232; VST=240; LS=[244,246]; TT=248
F=2; D=3; T0=4; T1=5
pro = []
e = pro.append
e("s_setprio %d" % env("PRIOC", 2))
e(f"s_mov_b32 s{sThr}, {fbits(LTHR)}"); e(f"s_mov_b32 s{sPass}, 0"); e(f"s_mov_b32 s{sHc}, s{sH}")
e("v_and_b32 v2, 31, v0"); e("v_lshrrev_b32 v3, 5, v0")
e("v_and_b32 v4, 15, v2"); e("v_xor_b32 v4, v4, v3"); e("v_lshlrev_b32 v4, 4, v4"); e("v_lshl_add_u32 v4, v2, 8, v4")
for s_ in range(8): e(f"v_xor_b32 v{KST+s_}, {32*s_}, v4")
e("v_lshrrev_b32 v2, 2, v0"); e("v_and_b32 v2, 3, v2")
e("v_lshrrev_b32 v4, 4, v0"); e("v_and_b32 v4, 1, v4"); e("v_lshlrev_b32 v4, 5, v4")
e("v_and_b32 v5, 1, v0"); e("v_lshl_add_u32 v4, v5, 4, v4"); e("v_and_b32 v5, 2, v0"); e("v_lshl_add_u32 v4, v5, 2, v4")
e("v_lshl_add_u32 v4, v2, 8, v4"); e("v_lshl_add_u32 v4, v2, 6, v4"); e("v_lshl_add_u32 v4, v3, 10, v4")
for w in range(4): e(f"v_xor_b32 v{VST+w}, {64*w}, v4")

def k_reads(slot): return [f"ds_read_b128 {v(KF+4*s_,4)}, v{KST+s_} offset:{KRING+8192*slot}" for s_ in range(8)]
def v_reads(slot, kb):
    return [f"ds_read_b64_tr_b16 {v(VF+(kb*4+w)*4+2*ee,2)}, v{VST+w} offset:{VRING+8192*slot+4096*kb+2048*ee}" for w in range(4) for ee in range(2)]
def qk_mfmas(par, c0): return [mf(S[par], KF+4*s_, Q+4*s_, c0 if s_ == 0 else None) for s_ in range(8)]
def pv_mfmas(par): return [mf(O+16*w, VF+(kb*4+w)*4, P[par]+4*kb) for kb in range(2) for w in range(4)]
def max_ops(sb):
    return [f"v_max3_f32 v{T0}, v{sb}, v{sb+1}, v{sb+2}", f"v_max3_f32 v{T1}, v{sb+3}, v{sb+4}, v{sb+5}",
            f"v_max3_f32 v{T0}, v{T0}, v{sb+6}, v{sb+7}", f"v_max3_f32 v{T1}, v{T1}, v{sb+8}, v{sb+9}",
            f"v_max3_f32 v{T0}, v{T0}, v{sb+10}, v{sb+11}", f"v_max3_f32 v{T1}, v{T1}, v{sb+12}, v{sb+13}",
            f"v_max3_f32 v{T0}, v{T0}, v{sb+14}, v{sb+15}", f"v_max_f32 v{T0}, v{T0}, v{T1}",
            f"v_mov_b32 v{T1}, v{T0}", "s_nop 1", f"v_permlane32_swap_b32 v{T0}, v{T1}", "s_nop 0", f"v_max_f32 v{D}, v{T0}, v{T1}"]
def sm_ops(sp, lold=None):
    sb = S[sp]; pb = P[sp]; ln = LS[sp]
    o = []
    for i in range(16 + 2):
        if i < 16: o.append(f"v_exp_f32 v{TT+(i&7)}, v{sb+i}")
        j = i - 2
        if 0 <= j < 16:
            if j < 2:
                o.append(f"v_mov_b32 v{ln+j}, v{TT+j}" if lold is None else f"v_add_f32 v{ln+j}, v{lold+j}, v{TT+j}")
            else:
                o.append(f"v_add_f32 v{ln+(j&1)}, v{ln+(j&1)}, v{TT+(j&7)}")
            if j & 1: o.append(f"v_cvt_pk_bf16_f32 v{pb+(j>>1)}, v{TT+((j-1)&7)}, v{TT+(j&7)}")
    return o
ool = []
site = [0]
def rare_block(n, par, qk):
    sp = 1 - par
    o = [f"L_rare{n}:"] + max_ops(S[sp]) + [f"v_max_f32 v{D}, 0, v{D}", f"v_exp_f32 v{F}, -v{D}"]
    o += [f"v_sub_f32 v{S[sp]+i}, v{S[sp]+i}, v{D}" for i in range(16)]
    o += [f"v_mul_f32 v{LS[par]+j}, v{LS[par]+j}, v{F}" for j in range(2)]
    o += sm_ops(sp, LS[par])
    if qk: o += [f"v_sub_f32 v{S[par]+i}, v{S[par]+i}, v{D}" for i in range(16)]
    o += [f"v_sub_f32 v{NEGM+i}, v{NEGM+i}, v{D}" for i in range(16)]
    o += [f"v_mul_f32 v{O+i}, v{O+i}, v{F}" for i in range(64)]
    o += [f"s_branch L_back{n}"]
    return o
def at_step(a, qk=True, extra=None):
    par = a & 1
    n = site[0]; site[0] += 1
    o = ["s_barrier"]
    mm = pv_mfmas(par) + (qk_mfmas(par, v(NEGM, 16)) if qk else [])
    kr = k_reads(a % 4) if qk else []
    vs = (a - 1) % 4
    gaps = {}
    if qk:
        gaps[-1] = kr[:2]
        spread(kr[2:], 0, 2, gaps)
        sm = sm_ops(1 - par, LS[par])
        spread(sm, 2, 14, gaps)
        spread(v_reads(vs, 0), 4, 7, gaps)
        gaps[7].append("s_waitcnt lgkmcnt(8)")
        spread(v_reads(vs, 1), 8, 11, gaps)
    else:
        gaps[-1] = ["s_nop 5"]
        sm = sm_ops(1 - par, LS[par])
        spread(sm, 2, 7, gaps)
        spread(v_reads(vs, 0), 4, 6, gaps)
        gaps[7] = v_reads(vs, 1) + gaps[7]
    last = len(mm) - 1
    ln = LS[1 - par]
    chk = [f"v_max_f32 v{T0}, v{ln}, v{ln+1}", f"v_cmp_lt_f32 vcc, s{sThr}, v{T0}"]
    gaps.setdefault(last, []).extend(chk + (extra or []) + [f"s_cbranch_vccnz L_rare{n}", f"L_back{n}:"])
    ool.append(rare_block(n, par, qk))
    o += interleave(mm, gaps)
    o.append("s_waitcnt lgkmcnt(0)")
    return o
def at_step0():
    o = ["s_barrier", f"s_lshl_b32 s{sT0}, s{sWave}, 13", f"s_add_u32 s{sT0}, s{sT0}, {HAND}", f"v_add_u32 v{T0}, s{sT0}, v1"]
    kr = k_reads(0)
    qr = [f"ds_read_b128 {v(Q+4*s_,4)}, v{T0} offset:{1024*s_}" for s_ in range(8)]
    for s_ in range(7): o += [qr[s_], kr[s_]]
    o += [qr[7], "s_waitcnt lgkmcnt(13)", kr[7]]
    mm = qk_mfmas(0, "0")
    gaps = {}
    for k in range(7): gaps[k] = [f"s_waitcnt lgkmcnt({max(0, 12-2*k)})"]
    zs = [f"v_mov_b32 v{O+i}, 0" for i in range(64)]
    spread(zs, 0, 7, gaps)
    for k in range(7): gaps[k] = gaps[k][1:] + gaps[k][:1]
    o += interleave(mm, gaps)
    return o
def at_step1(extra):
    o = ["s_barrier"] + k_reads(1) + v_reads(0, 0)[:6] + extra
    o += max_ops(S[0])
    o += [f"v_sub_f32 v{NEGM+i}, 0, v{D}" for i in range(16)]
    o += ["s_waitcnt lgkmcnt(6)", "s_nop 0"]
    mm = qk_mfmas(1, v(NEGM, 16))
    gaps = {}
    ops = [f"v_sub_f32 v{S[0]+i}, v{S[0]+i}, v{D}" for i in range(16)] + sm_ops(0, None)
    spread(ops, 0, 7, gaps)
    gaps[0] = v_reads(0, 0)[6:] + gaps[0]
    gaps[1] = v_reads(0, 1)[:4] + gaps[1]
    gaps[2] = v_reads(0, 1)[4:] + gaps[2]
    o += interleave(mm, gaps) + ["s_waitcnt lgkmcnt(0)"]
    return o
def at_last():
    L0 = LS[1]; L1 = LS[1] + 1
    o = ["s_barrier"] + pv_mfmas(1)
    o += [f"v_add_f32 v{L0}, v{L0}, v{L1}", f"v_mov_b32 v{L1}, v{L0}", "s_nop 1", f"v_permlane32_swap_b32 v{L0}, v{L1}", "s_nop 0",
          f"v_add_f32 v{L0}, v{L0}, v{L1}", f"v_rcp_f32 v{L0}, v{L0}"]
    o += [f"s_mul_i32 s{sOb}, s{sBr}, 24", f"s_mul_i32 s{sOb2}, s{sB}, 3", f"s_add_u32 s{sOb}, s{sOb}, s{sOb2}", f"s_add_u32 s{sOb}, s{sOb}, s{sWave}",
          f"s_lshl_b32 s{sOb}, s{sOb}, 5", f"s_add_u32 s{sOb}, s{sOb}, s{sHc}", f"s_lshl_b32 s{sOb}, s{sOb}, 13", f"s_add_u32 s{sOb2}, s{sOb}, 4096", "s_nop 1"]
    for s_ in range(8):
        src = O + 16 * (s_ >> 1) + 8 * (s_ & 1)
        for t in range(8): o.append(f"v_mul_f32 v{src+t}, v{src+t}, v{L0}")
        for t in range(4): o.append(f"v_cvt_pk_bf16_f32 v{VF+4*s_+t}, v{src+2*t}, v{src+2*t+1}")
        o.append(f"buffer_store_dwordx4 {v(VF+4*s_,4)}, v1, {srd(rWS)}, s{sOb if s_<4 else sOb2} offen offset:{1024*(s_&3)} sc1")
    return o
def flag_store():
    return ["s_waitcnt vmcnt(0)", f"s_lshr_b32 s{sT0}, s{sOb}, 6", f"s_add_u32 s{sT0}, s{sT0}, {FLAGB}", f"v_mov_b32 v6, s{sNonce}", "v_mov_b32 v7, 0",
            "s_mov_b64 exec, 1", f"buffer_store_dword v6, v7, {srd(rWS)}, s{sT0} offen sc1", "s_mov_b64 exec, -1"]
def bar_loop(n, lab):
    return [f"s_mov_b32 s{sCnt}, {n}", f"{lab}:", "s_barrier", f"s_sub_u32 s{sCnt}, s{sCnt}, 1", f"s_cmp_lg_u32 s{sCnt}, 0", f"s_cbranch_scc1 {lab}"]
nonce_load = [f"s_load_dword s{sNonce}, s[38:39], 0", "s_waitcnt lgkmcnt(0)"]

emit(pro)
emit(bar_loop(NQ, "L_cq"))
emit(nonce_load)
emit(stamp(1))
A.label("L_head")
a0 = at_step0(); a1 = at_step1([])
emit(a0); emit(a1)
I(f"s_cmp_eq_u32 s{sPass}, 0"); I("s_cbranch_scc1 L_noflag")
emit(flag_store())
A.label("L_noflag")
I(f"s_mov_b32 s{sCnt}, 8"); I("s_branch L_a2")
A.label("L_aloop")
st4 = [at_step(4), at_step(5), at_step(6)]
st4.append(at_step(7, extra=[f"s_sub_u32 s{sCnt}, s{sCnt}, 1"]))
emit(st4[0]); emit(st4[1]); A.label("L_a2"); emit(st4[2]); emit(st4[3])
I(f"s_cmp_lg_u32 s{sCnt}, 0"); I("s_cbranch_scc1 L_aloop")
a32 = at_step(32, qk=False)
a33 = at_last()
emit(a32); emit(a33)
if ST:
    I(f"s_cmp_lg_u32 s{sPass}, 0"); I("s_cbranch_scc1 L_stx"); emit(stamp(2)); A.label("L_stx")
I(f"s_add_u32 s{sHc}, s{sHc}, 16")
I(f"s_add_u32 s{sPass}, s{sPass}, 1"); I(f"s_cmp_lt_u32 s{sPass}, 2"); I("s_cbranch_scc1 L_head")
ct = [f"s_cmp_ge_u32 s{sI}, 30", "s_cbranch_scc1 L_cfin"] + tail_addr_setup() + tail_bases() + zero_acc() + ["s_barrier"] + tail_pre_reads()
ct += flag_store() + stamp(3) + tail_refill() + ["s_branch L_tail"]
emit(ct)
A.label("L_cfin"); emit(flag_store()); I("s_endpgm")
for blk in ool: emit(blk)
errs = check_hazards(pro + a0 + a1 + st4[2] + st4[3] + st4[0] + st4[1] + st4[2] + st4[3] + a32 + a33 + a0 + a1 + flag_store() + st4[2], "C")
errs += check_hazards(a32 + a33 + ct, "Ct")
def with_ool(step):
    t = []
    for x in step:
        t.append(x)
        if x.startswith("s_cbranch") and "L_rare" in x:
            lab = x.split()[1] + ":"
            t += [b for b in ool if b[0] == lab][0]
    return t
errs += check_hazards(a1 + with_ool(st4[2]) + with_ool(st4[3]) + with_ool(st4[0]) + with_ool(st4[1]) + with_ool(st4[2]) + with_ool(st4[3]) + with_ool(a32) + a33, "Crare")

QACC = 8; XF = [72, 96]; WF = [120, 128]; QB = 136
vXD = 2; vWq = 3; XR = [[160, 161], [162, 163]]; WR = [164, 165]
g = []
e = g.append
e("L_g:")
e("s_setprio %d" % env("PRIOG", 0))
e(f"s_sub_u32 s12, s{sWave}, 4")
e("v_lshrrev_b32 v6, 4, v0"); e("v_and_b32 v7, 3, v0"); e("v_xor_b32 v7, v7, v6"); e("v_lshlrev_b32 v7, 4, v7")
e(f"v_lshrrev_b32 v{vXD}, 2, v0"); e(f"v_mul_u32_u24 v{vXD}, 1280, v{vXD}"); e(f"v_add_u32 v{vXD}, v{vXD}, v7")
e("s_cmp_eq_u32 s12, 3"); e("s_cselect_b32 s13, 0x10000000, 0"); e(f"v_add_u32 v{vXD}, s13, v{vXD}")
e(f"s_mul_i32 s{sXb}, s{sB}, 122880"); e("s_mul_i32 s13, s12, 40960"); e(f"s_add_u32 s{sXb}, s{sXb}, s13")
e("v_lshlrev_b32 v7, 2, v6"); e(f"v_and_b32 v{vWq}, 15, v0"); e(f"v_xor_b32 v7, v7, v{vWq}"); e("v_lshlrev_b32 v7, 4, v7"); e(f"v_lshl_add_u32 v{vWq}, v6, 13, v7")
e(f"s_lshl_b32 s{sWb}, s{sH}, 8"); e("s_lshl_b32 s13, s12, 16"); e(f"s_add_u32 s{sWb}, s{sWb}, s13")
e("s_lshl_b32 s14, s12, 11")
gpro2 = []
e = gpro2.append
e("v_and_b32 v6, 31, v0"); e("v_lshrrev_b32 v7, 5, v0"); e("v_lshrrev_b32 v4, 2, v6"); e("v_and_b32 v4, 3, v4"); e("v_xor_b32 v4, v4, v7"); e("v_lshlrev_b32 v4, 4, v4")
e(f"v_lshl_add_u32 v4, v6, 6, v4"); e(f"v_add_u32 v{XR[0][0]}, {GA}, v4"); e(f"v_xor_b32 v{XR[0][1]}, 32, v{XR[0][0]}")
e(f"v_add_u32 v{XR[1][0]}, 49152, v{XR[0][0]}"); e(f"v_add_u32 v{XR[1][1]}, 49152, v{XR[0][1]}")
e("v_lshrrev_b32 v6, 2, v0"); e("v_and_b32 v6, 3, v6")
e("v_lshrrev_b32 v4, 4, v0"); e("v_and_b32 v4, 1, v4"); e("v_lshlrev_b32 v4, 5, v4")
e("v_and_b32 v5, 1, v0"); e("v_lshl_add_u32 v4, v5, 4, v4"); e("v_and_b32 v5, 2, v0"); e("v_lshl_add_u32 v4, v5, 2, v4")
e("v_lshl_add_u32 v4, v6, 8, v4"); e("v_lshl_add_u32 v4, v6, 6, v4"); e("v_lshl_add_u32 v4, v7, 11, v4")
e("s_lshl_b32 s13, s12, 6"); e("v_xor_b32 v4, s13, v4")
e(f"v_add_u32 v{WR[0]}, {GA+8192}, v4"); e(f"v_add_u32 v{WR[1]}, 49152, v{WR[0]}")
e(f"s_mov_b32 s{sPass}, 0")
def q_issue(t):
    sl = GA + (t % 6) * 16384
    o = [f"s_add_u32 m0, s14, {sl}", f"s_add_u32 s{sT0}, s{sXb}, {t*64}", f"s_add_u32 s{sT1}, s{sXb}, {t*64 + 20480 - 1024}",
         f"buffer_load_dwordx4 v{vXD}, {srd(rX)}, s{sT0} offen lds", f"buffer_load_dwordx4 v{vXD}, {srd(rX)}, s{sT1} offen offset:1024 lds",
         f"s_add_u32 m0, s14, {sl + 8192}", f"s_add_u32 s{sT0}, s{sWb}, {t*262144}", f"s_add_u32 s{sT1}, s{sWb}, {t*262144 + 32768 - 1024}",
         f"buffer_load_dwordx4 v{vWq}, {srd(rW)}, s{sT0} offen lds", f"buffer_load_dwordx4 v{vWq}, {srd(rW)}, s{sT1} offen offset:1024 lds"]
    return o
def q_reads(t):
    sl = t % 6; hi = sl // 3; so = (sl % 3) * 16384; par = t & 1
    o = []
    for s_ in range(2):
        o += [f"ds_read_b64_tr_b16 {v(WF[par]+s_*4+2*ee,2)}, v{WR[hi]} offset:{so+4096*s_+1024*ee}" for ee in range(2)]
        o += [f"ds_read_b128 {v(XF[par]+(s_*3+qb)*4,4)}, v{XR[hi][s_]} offset:{so+2048*qb}" for qb in range(3)]
    return o
def q_mfmas(t):
    par = t & 1
    return [mf(QACC+16*qb, WF[par]+s_*4, XF[par]+(s_*3+qb)*4, "0" if (t == 0 and s_ == 0) else None) for s_ in range(2) for qb in range(3)]
QD = 5
qpro = []
vm = VM()
for t in range(QD): qpro += q_issue(t); vm.issue(t, 4)
qb_ = [vm.wait(0)]
for t in range(NQ):
    qb_.append("s_barrier")
    rd = q_reads(t)
    iss = []
    if t + QD < NQ: iss = q_issue(t + QD); vm.issue(t + QD, 4)
    if t == 0:
        qb_ += rd + iss
    else:
        gaps = {-1: rd[:4]}
        spread(rd[4:], 0, 2, gaps)
        spread(iss, 2, 5, gaps)
        qb_ += interleave(q_mfmas(t - 1), gaps)
    if t + 1 < NQ:
        qb_.append(vm.wait(t + 1))
    qb_.append("s_waitcnt lgkmcnt(0)")
qb_ += q_mfmas(NQ - 1) + [f"s_mov_b32 s{sT0}, {fbits(CSC)}", f"s_add_u32 s{sT1}, s14, {HAND}", f"v_add_u32 v6, s{sT1}, v1", "s_nop 6"]
for qb in range(3):
    for hf in range(2):
        src = QACC + 16 * qb + 8 * hf
        qb_ += [f"v_mul_f32 v{src+t}, s{sT0}, v{src+t}" for t in range(8)]
        dst = QB + (qb * 2 + hf) * 4
        qb_ += [f"v_cvt_pk_bf16_f32 v{dst+t}, v{src+2*t}, v{src+2*t+1}" for t in range(4)]
        qb_.append(f"ds_write_b128 v6, {v(dst,4)} offset:{qb*8192 + hf*1024}")
qb_.append("s_waitcnt lgkmcnt(0)")
emit(g); emit(qpro); emit(gpro2)
A.label("L_gq")
emit(qb_)
I(f"s_cmp_lg_u32 s{sPass}, 0"); I("s_cbranch_scc1 L_go")
Q2S = env("Q2S", 3)
I(f"s_mov_b32 s{sPass}, 1"); I(f"s_add_u32 s{sWb}, s{sWb}, 4096")
I("s_barrier"); I("s_barrier")
if flag("noq2"):
    emit(bar_loop(Q2S - 2 + NQ, "L_gx"))
else:
    emit(qpro)
    for _ in range(Q2S - 2): I("s_barrier")
    I("s_branch L_gq")
A.label("L_go")
I(f"s_cmp_ge_u32 s{sI}, 30"); I("s_cbranch_scc1 L_end")
emit(nonce_load)
emit(tail_addr_setup())
go = [f"s_mul_i32 s{sWb}, s12, {512*1280}", f"s_add_u32 s{sWb}, s{sWb}, s{sWOb}", f"s_lshl_b32 s{sXb}, s12, 15", f"s_add_u32 s{sXb}, s{sXb}, s{sOI}",
      f"s_lshl_b32 s{sHc}, s12, 2"] + poll_addr(3, sHc)
go += [f"s_mul_i32 s{sOb}, s{sWave}, {256*1280}", f"s_add_u32 s{sOb}, s{sOb}, s{sWOb}", f"s_add_u32 s{sOb}, s{sOb}, {2048*1280}"]
go += bar_loop(NA - Q2S - NQ + 1, "L_gi")
PS = env("PS", 6)
OD = 4
vm = VM()
def wo_u(u):
    sl = ((u + 4) % 5) * 4096
    vm.issue(("w", u), 4)
    return wo_dma(sWb, 32 * u, ('s', sl)) if u < 16 else wo_dma(sOb, 32 * (u - 16), ('s', sl))
def o_u(u):
    vm.issue(("o", u), 4)
    return o_loads(sXb, u, u % 8)
C0 = PS + 2
for a_ in range(1, NA):
    go.append("s_barrier")
    if flag("noo1") and a_ - C0 != 19: continue
    if 1 <= a_ <= 5: go += wo_u(a_ - 1)
    if a_ == PS:
        go += poll(); vm.drain()
        go += o_u(0) + o_u(1)
    if a_ == PS + 1: go += o_u(2) + o_u(3)
    u = a_ - C0
    if 0 <= u <= 16:
        gaps = {}
        rd = []
        if u < 16:
            if vm.has(("w", u)): go.append(vm.wait(("w", u)))
            rd = f_reads((u + 4) % 5, (u + 2) % 3)
        if u >= 1:
            if vm.has(("o", u - 1)): go.append(vm.wait(("o", u - 1)))
            spread(rd, -1, 2, gaps)
            iss = wo_u(u + 4)
            if u - 1 + OD < 16: iss += o_u(u - 1 + OD)
            spread(iss, 3, 7, gaps)
            go += interleave(o_mfmas((u + 1) % 3, (u - 1) % 8, first=(u == 1)), gaps)
        else:
            go += rd
        go.append("s_waitcnt lgkmcnt(0)")
    if u == 19:
        go += ["s_waitcnt vmcnt(0)"] + tail_bases() + tail_pre_reads() + tail_refill()
assert C0 + 19 < NA
go += ["s_barrier", "s_branch L_tail"]
emit(go)
errs += check_hazards(g + qpro + gpro2 + qb_ + qpro + qb_[:60], "G")
errs += check_hazards(tail_addr_setup() + go, "Go")

A.label("L_ld")
I("s_setprio 3")
I("s_memrealtime s[12:13]")
for p in range(2):
    I(f"s_lshl_b32 s{sKV+p}, s{sB}, 5"); I(f"s_add_u32 s{sKV+p}, s{sKV+p}, s{sH}")
    if p: I(f"s_add_u32 s{sKV+p}, s{sKV+p}, 16")
    I(f"s_lshl_b32 s{sKV+p}, s{sKV+p}, 18")
I("v_lshrrev_b32 v6, 4, v0")
I("v_and_b32 v7, 15, v0"); I("v_xor_b32 v7, v7, v6"); I("v_lshlrev_b32 v7, 4, v7"); I("v_lshl_add_u32 v248, v6, 8, v7")
for j in range(1, 4): I(f"v_xor_b32 v{248+j}, {64*j}, v248")
I("v_lshlrev_b32 v7, 2, v6"); I("v_and_b32 v5, 15, v0"); I("v_xor_b32 v7, v7, v5"); I("v_lshlrev_b32 v7, 4, v7"); I("v_lshl_add_u32 v252, v6, 8, v7")
I("s_waitcnt lgkmcnt(0)"); I("s_or_b32 s12, s12, 1"); I("v_mov_b32 v254, s12"); I("v_mov_b32 v255, 0"); I("v_mov_b32 v253, 0")
I("s_mov_b64 exec, 1"); I(f"buffer_atomic_cmpswap v[254:255], v253, {srd(rDBG)}, 0 offen sc1"); I("s_mov_b64 exec, -1")
emit(tail_addr_setup())
vm = VM(); vm.issue("cas")
def kv_issue(kind, it):
    p, t = divmod(it, 32)
    base = (KRING if kind == "K" else VRING) + (t % 4) * 8192
    o = []
    for half in range(2):
        o += [f"s_mov_b32 m0, {base + 4096*half}", f"s_add_u32 s{sT0}, s{sKV+p}, {t*8192 + 4096*half}"]
        for i in range(4):
            vo = 248 + i if kind == "K" else 252
            o.append(f"buffer_load_dwordx4 v{vo}, {srd(rK if kind=='K' else rV)}, s{sT0} offen offset:{1024*i} nt lds")
    vm.issue((kind, it), 8)
    return o
def use_step(kind, it):
    p, t = divmod(it, 32)
    return NQ + NA * p + t + (0 if kind == "K" else 1)
NS = NQ + 2 * NA
init = eval(os.environ.get("KVINIT", "[-1,-1,-1,-1,4,4,8,8]"))
order = [("K",0),("V",0),("K",1),("V",1),("K",2),("V",2),("K",3),("V",3)]
sched = {}
for st_, it in zip(init, order): sched.setdefault(st_, []).append(it)
for it in range(4, 64):
    for kind in "KV": sched.setdefault(use_step(kind, it - 4) + 1, []).append((kind, it))
def free_step(addr):
    if addr < VRING: return use_step("K", 60 + addr // 8192) + 1
    if addr < GA: return use_step("V", 60 + (addr - VRING) // 8192) + 1
    return NQ + NA + 27
for r in range(4):
    for c in range(5):
        ad = r * REG + c * 4096
        sched.setdefault(free_step(ad), []).append(("W", r, c))
lastkv = max(s_ for s_, l in sched.items() if any(x[0] != "W" for x in l))
CAP = env("CAP", 63)
def do_issue(st_):
    for it in sched.get(st_, []):
        n = 4 if it[0] == "W" else 8
        if len(vm.q) + n > CAP:
            I(f"s_waitcnt vmcnt({CAP - n})"); vm.q = vm.q[len(vm.q) - (CAP - n):]
        if it[0] == "W":
            _, r, c = it
            emit(wo_dma(sWOb, 2048 + 256 * r + 32 * c, ('c', r * REG + c * 4096))); vm.issue(it, 4)
        else:
            emit(kv_issue(*it))
        assert len(vm.q) <= 63, (st_, len(vm.q))
do_issue(-1)
for st_ in range(NS):
    if st_ == NQ - 2 and vm.has("cas"): I(vm.wait("cas"))
    I("s_barrier")
    if st_ == NQ + NA + 27:
        pass
    do_issue(st_)
    need = [(k, it) for k in "KV" for it in range(64) if use_step(k, it) == st_ + 1 and vm.has((k, it))]
    if need:
        last = max(need, key=lambda t: max(i for i, x in enumerate(vm.q) if x == t))
        I(vm.wait(last))
I(f"s_cmp_ge_u32 s{sI}, 30"); I("s_cbranch_scc1 L_end")
lt = nonce_load + tail_bases() + zero_acc() + ["s_waitcnt vmcnt(0)", "s_barrier"] + tail_pre_reads() + tail_refill()
emit(lt)

tl = ["L_tail:"] + poll() + stamp(4)
vm = VM()
for c in range(8): tl += o_loads(sXb, c, c); vm.issue(c, 4)
for c in range(8):
    tl.append(vm.wait(c))
    if c >= 3: tl.append(f"s_waitcnt lgkmcnt({8 if c < 7 else 0})" if c >= 3 else "")
    tl += o_mfmas(c % 3, c)
    if c + 3 < 8: tl += f_reads((c + 3) % 5, c % 3)
tl = [x for x in tl if x]
tl += stamp(5)
tl += [f"v_add_u32 v6, s{sReg}, v1", "s_nop 7", "s_nop 2"]
for q in range(16): tl.append(f"ds_write_b128 v6, {v(ACC+4*q,4)} offset:{q*1024}")
tl += [f"s_lshl_b32 s{sT0}, s{sWave}, 11", f"v_add_u32 v2, s{sT0}, v1", f"v_add_u32 v3, {3*REG}, v2", f"v_add_u32 v4, {6*REG}, v2"]
tl += [f"s_lshl_b32 s{sT0}, s{sMt}, 1", f"s_lshr_b32 s{sT1}, s{sWave}, 2", f"s_add_u32 s{sT0}, s{sT0}, s{sT1}", f"s_mul_i32 s{sT0}, s{sT0}, 81920",
       f"s_mul_i32 s{sT1}, s{sBr}, 1280", f"s_add_u32 s{sT0}, s{sT0}, s{sT1}", f"s_add_u32 s{sT0}, s{sT0}, s{sWOb}",
       f"s_and_b32 s{sT1}, s{sWave}, 3", f"s_lshl_b32 s{sT1}, s{sT1}, 5", f"s_add_u32 s{sT0}, s{sT0}, s{sT1}",
       "v_and_b32 v6, 31, v0", "v_mul_u32_u24 v6, 2560, v6", "v_lshrrev_b32 v7, 5, v0", "v_lshl_add_u32 v5, v7, 4, v6"]
tl += ["s_waitcnt lgkmcnt(0)", "s_barrier"]
for r in range(8):
    for j in range(2):
        if r == 7 and j == 1: tl.append("s_waitcnt lgkmcnt(14)")
        tl.append(f"ds_read_b128 {v(OB+8*r+4*j,4)}, v{2 + r//3} offset:{(r%3)*REG + j*1024}")
for r in range(1, 8):
    tl.append(f"s_waitcnt lgkmcnt({14 - 2*r})")
    tl += [f"v_add_f32 v{OB+i}, v{OB+i}, v{OB+8*r+i}" for i in range(8)]
tl += [f"v_cvt_pk_bf16_f32 v{ACC+i}, v{OB+2*i}, v{OB+2*i+1}" for i in range(4)]
tl += [f"buffer_store_dwordx4 {v(ACC,4)}, v5, {srd(rOUT)}, s{sT0} offen"]
tl += stamp(6)
tl += ["L_end:", "s_endpgm"]
emit(tl)
errs += check_hazards(lt + tl, "T")
for x in errs: print(x)
assert not errs

A.raw('.section .rodata,"a"')
A.raw(".p2align 6")
A.raw(f".amdhsa_kernel {NAME}")
for l in ("next_free_vgpr 256", "next_free_sgpr 96", "accum_offset 256", "group_segment_fixed_size 0", "kernarg_size 104",
          "user_sgpr_count 2", "user_sgpr_kernarg_segment_ptr 1", "system_sgpr_workgroup_id_x 1"):
    A.raw("  .amdhsa_" + l)
A.raw(".end_amdhsa_kernel")
open(out_path, "w").write(A.text())
```

```python
import sys, math, struct, os
from asmlib import *

ARGS = sys.argv[1:]
def flag(x): return ("--" + x) in ARGS
def env(x, d): return int(os.environ.get(x, str(d)))
out_path = [x for x in ARGS if not x.startswith("--")][0]
NAME = "concat_heads__gqa_block_cached__mha_block_cached__near_ridge_kernel"
ST = flag("stamp")

def fbits(x): return "0x%08x" % struct.unpack("<I", struct.pack("<f", x))[0]
CSC = (128 ** -0.5) * math.log2(math.e)
LTHR = float(2 ** env("LTHR", 20))

A = Asm()
hdr = open("concat_heads__gqa_block_cached__mha_block_cached__near_ridge.s.ref").read().split("\n")
for l in hdr:
    if l.startswith("; @launch"): A.raw("; @launch grid=(256,1,1) block=(512,1,1) lds=163840")
    elif l.startswith(";"): A.raw(l)
    else: break
A.raw('.amdgcn_target "amdgcn-amd-amdhsa--gfx950"')
A.raw(".text")
A.raw(f".globl {NAME}"); A.raw(".p2align 8"); A.raw(f".type {NAME},@function"); A.label(NAME)
I = A.i
def emit(lst):
    for x in lst:
        if x.endswith(":"): A.raw(x)
        else: I(x)

KRING = 0; VRING = 32768; GA = 65536; HAND = GA + 2 * 16384; REG = 20480
FLAGB = 12582912; WSN = FLAGB + 1536 * 128 + (65536 if ST else 0); STB = FLAGB + 1536 * 128
NQ = 20; NA = 34
sWave = 4; sBr = 5; sB = 6; sH = 7; sMt = 8; sNt = 9; sI = 10; sReg = 11
rX = 44; rW = 48; rK = 52; rV = 56; rWO = 60; rWS = 64; rOUT = 68; rDBG = 72
sNonce = 76; sT0 = 77; sT1 = 78; sCnt = 79; sPass = 80; sThr = 81; sKV = 82; sXb = 84; sWb = 85; sOb = 86; sOb2 = 87
sWOb = 88; sOI = 89; sSpin = 90; sHc = 91
def srd(r): return f"s[{r}:{r+3}]"

I("s_cmp_ge_u32 s2, 256"); I("s_cbranch_scc1 L_end")
I("s_load_dwordx16 s[16:31], s[0:1], 0")
I("s_load_dwordx8 s[32:39], s[0:1], 64")
I("s_load_dwordx2 s[40:41], s[0:1], 96")
if ST: I("s_memrealtime s[92:93]")
I("v_lshrrev_b32 v1, 6, v0")
I("v_and_b32 v0, 63, v0")
I("s_and_b32 s3, s2, 7")
I(f"v_readfirstlane_b32 s{sWave}, v1")
I(f"s_lshr_b32 s{sI}, s2, 3")
I(f"s_and_b32 s{sBr}, s3, 1")
I("s_lshr_b32 s3, s3, 1")
I(f"s_lshr_b32 s{sB}, s{sI}, 2")
I(f"s_and_b32 s{sH}, s{sI}, 3"); I(f"s_lshl_b32 s12, s3, 2"); I(f"s_add_u32 s{sH}, s{sH}, s12")
if env("MAP", 1) == 0:
    I(f"s_mul_i32 s12, s{sI}, 26"); I("s_lshr_b32 s12, s12, 8")
    I(f"s_mul_i32 s13, s12, 10"); I(f"s_sub_u32 s{sNt}, s{sI}, s13")
    I(f"s_mul_i32 s{sMt}, s3, 3"); I(f"s_add_u32 s{sMt}, s{sMt}, s12")
else:
    I(f"s_mul_i32 s12, s{sI}, 52"); I("s_lshr_b32 s12, s12, 8")
    I(f"s_mul_i32 s13, s12, 5"); I(f"s_sub_u32 s{sNt}, s{sI}, s13")
    I("s_and_b32 s13, s3, 1"); I("s_mul_i32 s13, s13, 5"); I(f"s_add_u32 s{sNt}, s{sNt}, s13")
    I("s_lshr_b32 s13, s3, 1"); I(f"s_mul_i32 s{sMt}, s13, 6"); I(f"s_add_u32 s{sMt}, s{sMt}, s12")
I(f"s_mul_i32 s{sReg}, s{sWave}, {REG}")
I("v_lshlrev_b32 v1, 4, v0")
for r, n in ((rX, 983040), (rW, 5242880), (rK, 67108864), (rV, 67108864), (rWO, 5242880), (rWS, WSN), (rOUT, 1966080), (rDBG, 256)):
    I(f"s_mov_b32 s{r+2}, {n}"); I(f"s_mov_b32 s{r+3}, 0x20000")
I(f"s_mul_i32 s{sOI}, s{sBr}, 12"); I(f"s_add_u32 s{sOI}, s{sOI}, s{sMt}"); I(f"s_lshl_b32 s{sOI}, s{sOI}, 19")
I(f"s_lshl_b32 s{sWOb}, s{sNt}, 7")
I("s_waitcnt lgkmcnt(0)")
I(f"s_cmp_eq_u32 s{sBr}, 0")
for r, a_, b_ in ((rX, 16, 26), (rK, 18, 28), (rV, 20, 30), (rW, 22, 32), (rWO, 24, 34)):
    I(f"s_cselect_b32 s{r}, s{a_}, s{b_}"); I(f"s_cselect_b32 s{r+1}, s{a_+1}, s{b_+1}")
for r, a_ in ((rOUT, 36), (rDBG, 38), (rWS, 40)):
    I(f"s_mov_b32 s{r}, s{a_}"); I(f"s_mov_b32 s{r+1}, s{a_+1}")
if ST:
    I(f"s_lshl_b32 s93, s2, 3"); I(f"s_add_u32 s93, s93, s{sWave}"); I("s_lshl_b32 s93, s93, 5"); I(f"s_add_u32 s93, s93, {STB}")
    I("v_mov_b32 v254, s92"); I("v_mov_b32 v255, 0"); I(f"buffer_store_dword v254, v255, {srd(rWS)}, s93 offen")
I(f"s_cmp_eq_u32 s{sWave}, 3"); I("s_cbranch_scc1 L_ld")
I(f"s_cmp_gt_u32 s{sWave}, 3"); I("s_cbranch_scc1 L_g")

def mf(d, a_, b_, c=None):
    cc = v(d, 16) if c is None else c
    return f"v_mfma_f32_32x32x16_bf16 {v(d,16)}, {v(a_,4)}, {v(b_,4)}, {cc}"
def spread(ops, g0, g1, gaps):
    n = g1 - g0 + 1
    for k in range(n):
        lo = len(ops) * k // n; hi = len(ops) * (k + 1) // n
        gaps.setdefault(g0 + k, []).extend(ops[lo:hi])
class VM:
    def __init__(self): self.q = []
    def issue(self, tag, n=1): self.q += [tag] * n
    def wait(self, tag):
        idx = max(i for i, t in enumerate(self.q) if t == tag)
        n = len(self.q) - 1 - idx
        assert n <= 63, n
        self.q = self.q[idx + 1:]
        return f"s_waitcnt vmcnt({n})"
    def has(self, tag): return tag in self.q
    def drain(self): self.q = []
stampn = [0]
def stampq(k):
    o = stamp(k)
    if not o: return o
    return [f"s_cmp_lg_u32 s{sPass}, {env('STP', 0)}", "s_cbranch_scc1 " + o[-1][:-1]] + o
def stamp(k):
    if not ST: return []
    stampn[0] += 1
    lab = f"L_st{stampn[0]}"
    return ["s_nop 0", f"s_cbranch_scc1 {lab}", "s_memrealtime s[94:95]", "s_waitcnt lgkmcnt(0)",
            "v_mov_b32 v254, s94", "v_mov_b32 v255, 0", f"buffer_store_dword v254, v255, {srd(rWS)}, s93 offen offset:{4*k}", f"{lab}:"][2:]

ACC = 8; FB = [72, 88, 104]; OB = 120
vWD = 2; vTR = [3, 4]; vPOLL = 5
def tail_addr_setup():
    o = []
    e = o.append
    e("v_lshrrev_b32 v6, 3, v0"); e("v_lshrrev_b32 v7, 2, v0"); e("v_and_b32 v7, 4, v7"); e(f"v_and_b32 v{vWD}, 7, v0"); e(f"v_xor_b32 v7, v7, v{vWD}")
    e(f"v_mul_u32_u24 v{vWD}, 1280, v6"); e(f"v_lshl_add_u32 v{vWD}, v7, 4, v{vWD}")
    e("v_lshrrev_b32 v6, 2, v0"); e("v_and_b32 v6, 3, v6")
    e("v_lshrrev_b32 v3, 4, v0"); e("v_and_b32 v3, 1, v3"); e("v_lshlrev_b32 v3, 5, v3")
    e("v_and_b32 v7, 1, v0"); e("v_lshl_add_u32 v3, v7, 4, v3"); e("v_and_b32 v7, 2, v0"); e("v_lshl_add_u32 v3, v7, 2, v3")
    e("v_lshl_add_u32 v3, v6, 7, v3"); e("v_lshrrev_b32 v6, 1, v6"); e("v_lshl_add_u32 v3, v6, 6, v3")
    e("v_lshrrev_b32 v7, 5, v0"); e("v_lshl_add_u32 v3, v7, 10, v3")
    e(f"v_add_u32 v3, s{sReg}, v3"); e("v_xor_b32 v4, 64, v3")
    return o
def wo_dma(sbase, krow, m0):
    o = [f"s_add_u32 m0, s{sReg}, {m0[1]}" if m0[0] == 's' else f"s_mov_b32 m0, {m0[1]}"]
    for i in range(4):
        o.append(f"s_add_u32 s{sT0}, s{sbase}, {(krow + 8*i)*1280 - 1024*i}")
        o.append(f"buffer_load_dwordx4 v{vWD}, {srd(rWO)}, s{sT0} offen offset:{1024*i} lds")
    return o
def o_loads(sbase, c, buf, OB=OB):
    o = []
    for mb in range(2):
        o.append(f"s_add_u32 s{sT0}, s{sbase}, {mb*262144 + c*2048}")
        for s_ in range(2):
            o.append(f"buffer_load_dwordx4 {v(OB+buf*16+(mb*2+s_)*4,4)}, v1, {srd(rWS)}, s{sT0} offen offset:{1024*s_} sc1")
    return o
def f_reads(slot, fb):
    b = FB[0] + 16 * fb
    return [f"ds_read_b64_tr_b16 {v(b+(s_*2+w)*4+2*ee,2)}, v{vTR[w]} offset:{slot*4096+2048*s_+512*ee}" for s_ in range(2) for w in range(2) for ee in range(2)]
def o_mfmas(fb, buf, first=False, OB=OB):
    b = FB[0] + 16 * fb
    return [mf(ACC+16*(mb*2+w), b+(s_*2+w)*4, OB+buf*16+(mb*2+s_)*4, "0" if (first and s_ == 0) else None) for s_ in range(2) for mb in range(2) for w in range(2)]
polln = [0]
def poll():
    polln[0] += 1
    n = polln[0]
    return [f"s_mov_b32 s{sSpin}, 200000", f"L_poll{n}:",
            f"buffer_load_dword v6, v{vPOLL}, {srd(rWS)}, 0 offen sc1", f"s_sub_u32 s{sSpin}, s{sSpin}, 1", "s_waitcnt vmcnt(0)",
            f"v_cmp_ne_u32 vcc, s{sNonce}, v6", f"s_cbranch_vccz L_pd{n}", f"s_cmp_lg_u32 s{sSpin}, 0", f"s_cbranch_scc1 L_poll{n}", f"L_pd{n}:"]
def poll_addr(nh_mask, sHead0):
    return [f"s_lshr_b32 s{sT0}, s{sOI}, 6", f"s_lshl_b32 s{sT1}, s{sHead0}, 7", f"s_add_u32 s{sT0}, s{sT0}, s{sT1}", f"s_add_u32 s{sT0}, s{sT0}, {FLAGB}",
            f"v_and_b32 v{vPOLL}, 1, v0", f"v_lshlrev_b32 v{vPOLL}, 12, v{vPOLL}", "v_lshrrev_b32 v6, 1, v0", f"v_and_b32 v6, {nh_mask}, v6",
            f"v_lshl_add_u32 v{vPOLL}, v6, 7, v{vPOLL}", f"v_add_u32 v{vPOLL}, s{sT0}, v{vPOLL}"]
def tail_bases():
    return [f"s_mul_i32 s{sWb}, s{sWave}, {256*1280}", f"s_add_u32 s{sWb}, s{sWb}, s{sWOb}", f"s_add_u32 s{sWb}, s{sWb}, {2048*1280}",
            f"s_lshl_b32 s{sXb}, s{sWave}, 14", f"s_add_u32 s{sXb}, s{sXb}, s{sOI}", f"s_add_u32 s{sXb}, s{sXb}, {128*1024}",
            f"s_lshl_b32 s{sHc}, s{sWave}, 1", f"s_add_u32 s{sHc}, s{sHc}, 16"] + poll_addr(1, sHc)
def tail_pre_reads():
    return f_reads(0, 0) + f_reads(1, 1)[:7] + ["s_waitcnt lgkmcnt(7)"] + f_reads(1, 1)[7:] + f_reads(2, 2)[:7] + ["s_waitcnt lgkmcnt(7)"] + f_reads(2, 2)[7:] + ["s_waitcnt lgkmcnt(0)"]
def tail_refill():
    return wo_dma(sWb, 160, ('s', 0)) + wo_dma(sWb, 192, ('s', 4096)) + wo_dma(sWb, 224, ('s', 8192))
def zero_acc(): return [f"v_mov_b32 v{ACC+i}, 0" for i in range(64)]

Q=8; O=40; S=[104,120]; P=[136,144]; KF=152; VF=184; NEGM=216; KST=232; VST=240; LS=[244,246]; TT=248
F=2; D=3; T0=4; T1=5
pro = []
e = pro.append
e("s_setprio %d" % env("PRIOC", 2))
e(f"s_mov_b32 s{sThr}, {fbits(LTHR)}"); e(f"s_mov_b32 s{sPass}, 0"); e(f"s_mov_b32 s{sHc}, s{sH}")
e("v_and_b32 v2, 31, v0"); e("v_lshrrev_b32 v3, 5, v0")
e("v_and_b32 v4, 15, v2"); e("v_xor_b32 v4, v4, v3"); e("v_lshlrev_b32 v4, 4, v4"); e("v_lshl_add_u32 v4, v2, 8, v4")
for s_ in range(8): e(f"v_xor_b32 v{KST+s_}, {32*s_}, v4")
e("v_lshrrev_b32 v2, 2, v0"); e("v_and_b32 v2, 3, v2")
e("v_lshrrev_b32 v4, 4, v0"); e("v_and_b32 v4, 1, v4"); e("v_lshlrev_b32 v4, 5, v4")
e("v_and_b32 v5, 1, v0"); e("v_lshl_add_u32 v4, v5, 4, v4"); e("v_and_b32 v5, 2, v0"); e("v_lshl_add_u32 v4, v5, 2, v4")
e("v_lshl_add_u32 v4, v2, 8, v4"); e("v_lshl_add_u32 v4, v2, 6, v4"); e("v_lshl_add_u32 v4, v3, 10, v4")
for w in range(4): e(f"v_xor_b32 v{VST+w}, {64*w}, v4")

PFD = env("PFD", 0); PFS = env("PFS", 64); PFA = env("PFA", 0); PFR = env("PFR", 1); PFM = os.environ.get("PFM", "")
rPF = rX; sIt = sKV; sPo = sKV + 1
if PFD:
    e(f"s_cmp_eq_u32 s{sWave}, 0")
    e(f"s_cselect_b32 s{rPF}, s{rK}, s{rV}"); e(f"s_cselect_b32 s{rPF+1}, s{rK+1}, s{rV+1}")
    e(f"s_cmp_lt_u32 s{sWave}, 2"); e(f"s_cselect_b32 s{rPF+2}, s{rK+2}, 0")
    e(f"s_lshl_b32 s{sPo}, s{sB}, 5"); e(f"s_add_u32 s{sPo}, s{sPo}, s{sH}"); e(f"s_lshl_b32 s{sPo}, s{sPo}, 18"); e(f"s_add_u32 s{sPo}, s{sPo}, {4*8192}")
    e(f"s_mov_b32 s{sSpin}, 8192"); e(f"s_mov_b32 s{sIt}, 4"); e(f"v_lshlrev_b32 v7, {int(math.log2(PFS))}, v0")
def pf_ops():
    if not PFD: return []
    o = [f"buffer_load_dword v6, v7, {srd(rPF)}, s{sPo} offen {PFM}"]
    if PFS == 64: o += [f"s_add_u32 s{sT1}, s{sPo}, 4096", f"buffer_load_dword v6, v7, {srd(rPF)}, s{sT1} offen {PFM}"]
    o += [f"s_add_u32 s{sIt}, s{sIt}, 1", f"s_cmp_eq_u32 s{sIt}, 32", f"s_cselect_b32 s{sT1}, {8192+15*262144}, s{sSpin}", f"s_add_u32 s{sPo}, s{sPo}, s{sT1}",
          f"s_cmp_ge_u32 s{sIt}, 64", f"s_cselect_b32 s{rPF+2}, 0, s{rPF+2}"]
    return o
def k_reads(slot): return [f"ds_read_b128 {v(KF+4*s_,4)}, v{KST+s_} offset:{KRING+8192*slot}" for s_ in range(8)]
def v_reads(slot, kb):
    return [f"ds_read_b64_tr_b16 {v(VF+(kb*4+w)*4+2*ee,2)}, v{VST+w} offset:{VRING+8192*slot+4096*kb+2048*ee}" for w in range(4) for ee in range(2)]
def qk_mfmas(par, c0): return [mf(S[par], KF+4*s_, Q+4*s_, c0 if s_ == 0 else None) for s_ in range(8)]
def pv_mfmas(par): return [mf(O+16*w, VF+(kb*4+w)*4, P[par]+4*kb) for kb in range(2) for w in range(4)]
def max_ops(sb):
    return [f"v_max3_f32 v{T0}, v{sb}, v{sb+1}, v{sb+2}", f"v_max3_f32 v{T1}, v{sb+3}, v{sb+4}, v{sb+5}",
            f"v_max3_f32 v{T0}, v{T0}, v{sb+6}, v{sb+7}", f"v_max3_f32 v{T1}, v{T1}, v{sb+8}, v{sb+9}",
            f"v_max3_f32 v{T0}, v{T0}, v{sb+10}, v{sb+11}", f"v_max3_f32 v{T1}, v{T1}, v{sb+12}, v{sb+13}",
            f"v_max3_f32 v{T0}, v{T0}, v{sb+14}, v{sb+15}", f"v_max_f32 v{T0}, v{T0}, v{T1}",
            f"v_mov_b32 v{T1}, v{T0}", "s_nop 1", f"v_permlane32_swap_b32 v{T0}, v{T1}", "s_nop 0", f"v_max_f32 v{D}, v{T0}, v{T1}"]
def sm_ops(sp, lold=None):
    sb = S[sp]; pb = P[sp]; ln = LS[sp]
    o = []
    for i in range(16 + 2):
        if i < 16: o.append(f"v_exp_f32 v{TT+(i&7)}, v{sb+i}")
        j = i - 2
        if 0 <= j < 16:
            if j < 2:
                o.append(f"v_mov_b32 v{ln+j}, v{TT+j}" if lold is None else f"v_add_f32 v{ln+j}, v{lold+j}, v{TT+j}")
            else:
                o.append(f"v_add_f32 v{ln+(j&1)}, v{ln+(j&1)}, v{TT+(j&7)}")
            if j & 1: o.append(f"v_cvt_pk_bf16_f32 v{pb+(j>>1)}, v{TT+((j-1)&7)}, v{TT+(j&7)}")
    return o
ool = []
site = [0]
def rare_block(n, par, qk):
    sp = 1 - par
    o = [f"L_rare{n}:"] + max_ops(S[sp]) + [f"v_max_f32 v{D}, 0, v{D}", f"v_exp_f32 v{F}, -v{D}"]
    o += [f"v_sub_f32 v{S[sp]+i}, v{S[sp]+i}, v{D}" for i in range(16)]
    o += [f"v_mul_f32 v{LS[par]+j}, v{LS[par]+j}, v{F}" for j in range(2)]
    o += sm_ops(sp, LS[par])
    if qk: o += [f"v_sub_f32 v{S[par]+i}, v{S[par]+i}, v{D}" for i in range(16)]
    o += [f"v_sub_f32 v{NEGM+i}, v{NEGM+i}, v{D}" for i in range(16)]
    o += [f"v_mul_f32 v{O+i}, v{O+i}, v{F}" for i in range(64)]
    o += [f"s_branch L_back{n}"]
    return o
def at_step(a, qk=True, extra=None):
    par = a & 1
    n = site[0]; site[0] += 1
    o = ["s_barrier"]
    mm = pv_mfmas(par) + (qk_mfmas(par, v(NEGM, 16)) if qk else [])
    kr = k_reads(a % 4) if qk else []
    vs = (a - 1) % 4
    gaps = {}
    if qk:
        gaps[-1] = kr[:2]
        spread(kr[2:], 0, 2, gaps)
        if env("PFSS", 1): spread(pf_ops(), 0, 1, gaps)
        sm = sm_ops(1 - par, LS[par])
        spread(sm, 2, 14, gaps)
        spread(v_reads(vs, 0), 4, 7, gaps)
        gaps[7].append("s_waitcnt lgkmcnt(8)")
        spread(v_reads(vs, 1), 8, 11, gaps)
    else:
        gaps[-1] = ["s_nop 5"]
        sm = sm_ops(1 - par, LS[par])
        spread(sm, 2, 7, gaps)
        spread(v_reads(vs, 0), 4, 6, gaps)
        gaps[7] = v_reads(vs, 1) + gaps[7]
    last = len(mm) - 1
    ln = LS[1 - par]
    chk = [f"v_max_f32 v{T0}, v{ln}, v{ln+1}", f"v_cmp_lt_f32 vcc, s{sThr}, v{T0}"]
    gaps.setdefault(last, []).extend(chk + (extra or []) + [f"s_cbranch_vccnz L_rare{n}", f"L_back{n}:"])
    ool.append(rare_block(n, par, qk))
    o += interleave(mm, gaps)
    o.append("s_waitcnt lgkmcnt(0)")
    return o
def at_step0():
    o = [f"s_lshl_b32 s{sT0}, s{sWave}, 13", f"s_add_u32 s{sT0}, s{sT0}, {GA}", f"s_mov_b32 s{sT1}, 2048", f"s_cmp_eq_u32 s{sWave}, 2",
         f"s_cselect_b32 s{sT0}, {4*REG+16384}, s{sT0}", f"s_cselect_b32 s{sT1}, {REG}, s{sT1}", f"v_add_u32 v{TT}, s{sT0}, v1"]
    o += [f"v_add_u32 v{TT+j+1}, s{sT1}, v{TT+j}" for j in range(3)] + ["s_barrier"]
    kr = k_reads(0)
    qr = [f"ds_read_b128 {v(Q+4*s_,4)}, v{TT+(s_>>1)} offset:{1024*(s_&1)}" for s_ in range(8)]
    for s_ in range(7): o += [qr[s_], kr[s_]]
    o += [qr[7], "s_waitcnt lgkmcnt(13)", kr[7]]
    mm = qk_mfmas(0, "0")
    gaps = {}
    for k in range(7): gaps[k] = [f"s_waitcnt lgkmcnt({max(0, 12-2*k)})"]
    zs = [f"v_mov_b32 v{O+i}, 0" for i in range(64)]
    spread(zs, 0, 7, gaps)
    for k in range(7): gaps[k] = gaps[k][1:] + gaps[k][:1]
    o += interleave(mm, gaps)
    return o
def at_step1(extra):
    o = ["s_barrier"] + k_reads(1) + v_reads(0, 0)[:6] + extra
    o += max_ops(S[0])
    o += [f"v_sub_f32 v{NEGM+i}, 0, v{D}" for i in range(16)]
    o += ["s_waitcnt lgkmcnt(6)", "s_nop 0"]
    mm = qk_mfmas(1, v(NEGM, 16))
    gaps = {}
    ops = [f"v_sub_f32 v{S[0]+i}, v{S[0]+i}, v{D}" for i in range(16)] + sm_ops(0, None)
    spread(ops, 0, 7, gaps)
    gaps[0] = v_reads(0, 0)[6:] + gaps[0]
    gaps[1] = v_reads(0, 1)[:4] + gaps[1]
    gaps[2] = v_reads(0, 1)[4:] + gaps[2]
    o += interleave(mm, gaps) + ["s_waitcnt lgkmcnt(0)"]
    return o
nonce_load = [f"s_load_dword s{sNonce}, s[38:39], 0", "s_waitcnt lgkmcnt(0)"]
def at_last():
    L0 = LS[1]; L1 = LS[1] + 1
    o = ["s_barrier", nonce_load[0]] + pv_mfmas(1)
    o += [f"v_add_f32 v{L0}, v{L0}, v{L1}", f"v_mov_b32 v{L1}, v{L0}", "s_nop 1", f"v_permlane32_swap_b32 v{L0}, v{L1}", "s_nop 0",
          f"v_add_f32 v{L0}, v{L0}, v{L1}", f"v_rcp_f32 v{L0}, v{L0}"]
    o += [f"s_mul_i32 s{sOb}, s{sBr}, 24", f"s_mul_i32 s{sOb2}, s{sB}, 3", f"s_add_u32 s{sOb}, s{sOb}, s{sOb2}", f"s_add_u32 s{sOb}, s{sOb}, s{sWave}",
          f"s_lshl_b32 s{sOb}, s{sOb}, 5", f"s_add_u32 s{sOb}, s{sOb}, s{sHc}", f"s_lshl_b32 s{sOb}, s{sOb}, 13", f"s_add_u32 s{sOb2}, s{sOb}, 4096", "s_nop 1"]
    for s_ in range(8):
        src = O + 16 * (s_ >> 1) + 8 * (s_ & 1)
        for t in range(8): o.append(f"v_mul_f32 v{src+t}, v{src+t}, v{L0}")
        for t in range(4): o.append(f"v_cvt_pk_bf16_f32 v{VF+4*s_+t}, v{src+2*t}, v{src+2*t+1}")
        o.append(f"buffer_store_dwordx4 {v(VF+4*s_,4)}, v1, {srd(rWS)}, s{sOb if s_<4 else sOb2} offen offset:{1024*(s_&3)} sc1")
    return o + ["s_waitcnt lgkmcnt(0)"]
def flag_store():
    return ["s_waitcnt vmcnt(0)", f"s_lshr_b32 s{sT0}, s{sOb}, 6", f"s_add_u32 s{sT0}, s{sT0}, {FLAGB}", f"v_mov_b32 v{TT}, s{sNonce}", f"v_mov_b32 v{TT+1}, 0",
            "s_mov_b64 exec, 1", f"buffer_store_dword v{TT}, v{TT+1}, {srd(rWS)}, s{sT0} offen sc1", "s_mov_b64 exec, -1"]
def bar_loop(n, lab):
    return [f"s_mov_b32 s{sCnt}, {n}", f"{lab}:", "s_barrier", f"s_sub_u32 s{sCnt}, s{sCnt}, 1", f"s_cmp_lg_u32 s{sCnt}, 0", f"s_cbranch_scc1 {lab}"]

PFG = env("PFG", 64)
I(f"s_cmp_lg_u32 s{sWave}, 2"); I("s_cbranch_scc1 L_nocas")
I("s_memrealtime s[12:13]"); I("v_mov_b32 v9, 0"); I("v_mov_b32 v10, 0"); I("s_waitcnt lgkmcnt(0)"); I("s_or_b32 s12, s12, 1"); I("v_mov_b32 v8, s12")
I("s_mov_b64 exec, 1"); I(f"buffer_atomic_cmpswap v[8:9], v10, {srd(rDBG)}, 0 offen sc1"); I("s_mov_b64 exec, -1")
A.label("L_nocas")
if PFG and not env('PFO', 0):
    sh = {16: 4, 64: 6, 128: 7}[PFG]
    ld = "buffer_load_dwordx4 {}" if PFG == 16 else "buffer_load_dword {}"
    dst = (lambda j: v(8 + 4 * j, 4)) if PFG == 16 else (lambda j: v(8 + j))
    I(f"s_cmp_eq_u32 s{sWave}, 1"); I("s_cbranch_scc1 L_pfx")
    if not flag("pfw2"): I(f"s_cmp_eq_u32 s{sWave}, 2"); I("s_cbranch_scc1 L_pfd")
    lpr = 256 // PFG
    rpi = 64 // lpr
    I(f"s_mul_i32 s12, s{sB}, {80*8192}"); I(f"s_lshl_b32 s13, s{sH}, 8"); I("s_add_u32 s12, s12, s13"); I(f"s_lshl_b32 s13, s{sWave}, 11"); I("s_add_u32 s12, s12, s13")
    I(f"v_lshrrev_b32 v2, {int(math.log2(lpr))}, v0"); I("v_lshlrev_b32 v2, 13, v2"); I(f"v_and_b32 v3, {lpr-1}, v0"); I(f"v_lshl_add_u32 v2, v3, {sh}, v2")
    for j in range((80 + rpi - 1) // rpi):
        I(ld.format(f"{dst(j)}, v2, {srd(rW)}, s12 offen")); I(f"s_add_u32 s12, s12, {rpi*8192}")
    I("s_branch L_pfd")
    A.label("L_pfx")
    I(f"s_mul_i32 s12, s{sB}, 122880"); I(f"s_and_b32 s13, s{sI}, 3"); I("s_mul_i32 s13, s13, 30720"); I("s_add_u32 s12, s12, s13")
    I(f"v_lshlrev_b32 v2, {sh}, v0")
    for j in range((30720 + 64 * PFG - 1) // (64 * PFG)):
        I(ld.format(f"{dst(j)}, v2, {srd(rX)}, s12 offen")); I(f"s_add_u32 s12, s12, {64*PFG}")
    A.label("L_pfd")
if PFG and env("PFO", 0):
    I(f"s_cmp_eq_u32 s{sWave}, 1"); I("s_cbranch_scc1 L_pfx")
    I(f"s_cmp_eq_u32 s{sWave}, 2"); I("s_cbranch_scc1 L_pfd")
    I(f"s_lshl_b32 s12, s{sB}, 13"); I(f"s_lshl_b32 s13, s{sH}, 8"); I("s_add_u32 s12, s12, s13"); I(f"s_add_u32 s12, s12, {128*8192}")
    I("v_lshrrev_b32 v2, 1, v0"); I("v_lshlrev_b32 v2, 16, v2"); I("v_and_b32 v3, 1, v0"); I("v_lshl_add_u32 v2, v3, 7, v2")
    for j in range(2):
        I(f"buffer_load_dword v{8+j}, v2, {srd(rW)}, s12 offen"); I(f"s_add_u32 s12, s12, {256*8192}")
    I("s_branch L_pfd")
    A.label("L_pfx")
    I(f"s_mul_i32 s12, s{sB}, 122880"); I(f"s_and_b32 s13, s{sI}, 3"); I("s_mul_i32 s13, s13, 30720"); I("s_add_u32 s12, s12, s13")
    I("v_lshrrev_b32 v2, 1, v0"); I("v_min_u32 v2, 23, v2"); I("v_mul_u32_u24 v2, 1280, v2"); I("v_and_b32 v3, 1, v0"); I("v_lshl_add_u32 v2, v3, 7, v2")
    for j in range(4):
        I(f"buffer_load_dword v{8+j}, v2, {srd(rX)}, s12 offen offset:{256*(j+1)}")
        if env("PFO", 0) == 2: I(f"buffer_load_dword v{12+j}, v2, {srd(rX)}, s12 offen offset:{256*(j+1)+64}")
    A.label("L_pfd")
emit(pro)
if PFD:
    nit = PFD // PFR
    if PFA > 0: emit(bar_loop(PFA, "L_cq"))
    if PFA < 0:
        emit(bar_loop(nit, "L_cq2")[:2] + pf_ops() * PFR + bar_loop(nit, "L_cq2")[3:]); emit(bar_loop(NQ, "L_cq3"))
    else:
        emit(bar_loop(nit, "L_cq2")[:3] + pf_ops() * PFR + bar_loop(nit, "L_cq2")[3:])
        if NQ - PFA - nit > 0: emit(bar_loop(NQ - PFA - nit, "L_cq3"))
        assert NQ - PFA - nit >= 0
else:
    emit(bar_loop(NQ, "L_cq"))
I("s_waitcnt vmcnt(0)")
emit(stamp(1))
A.label("L_head")
a0 = at_step0(); a1 = at_step1([])
emit(a0); emit(a1)
I(f"s_cmp_eq_u32 s{sPass}, 0"); I("s_cbranch_scc1 L_noflag")
emit(flag_store())
A.label("L_noflag")
I(f"s_mov_b32 s{sCnt}, 8"); I("s_branch L_a2")
A.label("L_aloop")
st4 = [at_step(4), at_step(5), at_step(6)]
st4.append(at_step(7, extra=[f"s_sub_u32 s{sCnt}, s{sCnt}, 1"]))
emit(st4[0]); emit(st4[1]); A.label("L_a2"); emit(st4[2]); emit(st4[3])
I(f"s_cmp_lg_u32 s{sCnt}, 0"); I("s_cbranch_scc1 L_aloop")
a32 = at_step(32, qk=False)
a33 = at_last()
emit(a32); emit(a33)
if ST:
    I(f"s_cmp_lg_u32 s{sPass}, 0"); I("s_cbranch_scc1 L_stx"); emit(stamp(2)); A.label("L_stx")
I(f"s_add_u32 s{sHc}, s{sHc}, 16")
I(f"s_add_u32 s{sPass}, s{sPass}, 1"); I(f"s_cmp_lt_u32 s{sPass}, 2"); I("s_cbranch_scc1 L_head")
import re as _re
def ren67(l): return [_re.sub(r"\bv7\b", "v251", _re.sub(r"\bv6\b", "v250", x)) for x in l]
ct = [f"s_cmp_ge_u32 s{sI}, 30", "s_cbranch_scc1 L_cfin"] + ren67(tail_addr_setup() + tail_bases()) + zero_acc() + ["s_barrier"] + tail_pre_reads()
ct += flag_store() + stamp(3) + tail_refill() + ["s_branch L_tail"]
emit(ct)
A.label("L_cfin"); emit(flag_store()); emit(stamp(3)); I("s_endpgm")
for blk in ool: emit(blk)
errs = check_hazards(pro + a0 + a1 + st4[2] + st4[3] + st4[0] + st4[1] + st4[2] + st4[3] + a32 + a33 + a0 + a1 + flag_store() + st4[2], "C")
errs += check_hazards(a32 + a33 + ct, "Ct")
def with_ool(step):
    t = []
    for x in step:
        t.append(x)
        if x.startswith("s_cbranch") and "L_rare" in x:
            lab = x.split()[1] + ":"
            t += [b for b in ool if b[0] == lab][0]
    return t
errs += check_hazards(a1 + with_ool(st4[2]) + with_ool(st4[3]) + with_ool(st4[0]) + with_ool(st4[1]) + with_ool(st4[2]) + with_ool(st4[3]) + with_ool(a32) + a33, "Crare")

QACC = 8; XF = [72, 96]; WF = [120, 128]; QB = 136
vXD = 2; vWq = 3; XR = [[160, 161], [162, 163]]; WR = [164, 165]
g = []
e = g.append
e("L_g:")
e("s_setprio %d" % env("PRIOG", 0))
e(f"s_sub_u32 s12, s{sWave}, 4")
e("v_lshrrev_b32 v6, 4, v0"); e("v_and_b32 v7, 3, v0"); e("v_xor_b32 v7, v7, v6"); e("v_lshlrev_b32 v7, 4, v7")
e(f"v_lshrrev_b32 v{vXD}, 2, v0"); e(f"v_mul_u32_u24 v{vXD}, 1280, v{vXD}"); e(f"v_add_u32 v{vXD}, v{vXD}, v7")
e("s_cmp_eq_u32 s12, 3"); e("s_cselect_b32 s13, 0x10000000, 0"); e(f"v_add_u32 v{vXD}, s13, v{vXD}")
e(f"s_mul_i32 s{sXb}, s{sB}, 122880"); e("s_mul_i32 s13, s12, 40960"); e(f"s_add_u32 s{sXb}, s{sXb}, s13")
e("v_lshlrev_b32 v7, 2, v6"); e(f"v_and_b32 v{vWq}, 15, v0"); e(f"v_xor_b32 v7, v7, v{vWq}"); e("v_lshlrev_b32 v7, 4, v7"); e(f"v_lshl_add_u32 v{vWq}, v6, 13, v7")
e(f"s_lshl_b32 s{sWb}, s{sH}, 8"); e("s_lshl_b32 s13, s12, 16"); e(f"s_add_u32 s{sWb}, s{sWb}, s13")
e("s_lshl_b32 s14, s12, 11")
gpro2 = []
e = gpro2.append
e("v_and_b32 v6, 31, v0"); e("v_lshrrev_b32 v7, 5, v0"); e("v_lshrrev_b32 v4, 2, v6"); e("v_and_b32 v4, 3, v4"); e("v_xor_b32 v4, v4, v7"); e("v_lshlrev_b32 v4, 4, v4")
e(f"v_lshl_add_u32 v4, v6, 6, v4"); e(f"v_add_u32 v{XR[0][0]}, {GA}, v4"); e(f"v_xor_b32 v{XR[0][1]}, 32, v{XR[0][0]}")
e(f"v_add_u32 v{XR[1][0]}, 49152, v{XR[0][0]}"); e(f"v_add_u32 v{XR[1][1]}, 49152, v{XR[0][1]}")
e("v_lshrrev_b32 v6, 2, v0"); e("v_and_b32 v6, 3, v6")
e("v_lshrrev_b32 v4, 4, v0"); e("v_and_b32 v4, 1, v4"); e("v_lshlrev_b32 v4, 5, v4")
e("v_and_b32 v5, 1, v0"); e("v_lshl_add_u32 v4, v5, 4, v4"); e("v_and_b32 v5, 2, v0"); e("v_lshl_add_u32 v4, v5, 2, v4")
e("v_lshl_add_u32 v4, v6, 8, v4"); e("v_lshl_add_u32 v4, v6, 6, v4"); e("v_lshl_add_u32 v4, v7, 11, v4")
e("s_lshl_b32 s13, s12, 6"); e("v_xor_b32 v4, s13, v4")
e(f"v_add_u32 v{WR[0]}, {GA+8192}, v4"); e(f"v_add_u32 v{WR[1]}, 49152, v{WR[0]}")
e(f"s_mov_b32 s{sPass}, 0")
def q_issue(t):
    sl = GA + (t % 6) * 16384
    o = [f"s_add_u32 m0, s14, {sl}", f"s_add_u32 s{sT0}, s{sXb}, {t*64}", f"s_add_u32 s{sT1}, s{sXb}, {t*64 + 20480 - 1024}",
         f"buffer_load_dwordx4 v{vXD}, {srd(rX)}, s{sT0} offen lds", f"buffer_load_dwordx4 v{vXD}, {srd(rX)}, s{sT1} offen offset:1024 lds",
         f"s_add_u32 m0, s14, {sl + 8192}", f"s_add_u32 s{sT0}, s{sWb}, {t*262144}", f"s_add_u32 s{sT1}, s{sWb}, {t*262144 + 32768 - 1024}",
         f"buffer_load_dwordx4 v{vWq}, {srd(rW)}, s{sT0} offen lds", f"buffer_load_dwordx4 v{vWq}, {srd(rW)}, s{sT1} offen offset:1024 lds"]
    if flag("noqload"): o = [x if not x.startswith("buffer") else "v_add3_u32 v200, v200, v200, v200" for x in o]
    if flag("noxload"): o = [x if not (x.startswith("buffer") and srd(rX) in x) else "v_add3_u32 v200, v200, v200, v200" for x in o]
    if flag("nowload"): o = [x if not (x.startswith("buffer") and srd(rW) in x) else "v_add3_u32 v200, v200, v200, v200" for x in o]
    return o
def q_reads(t):
    sl = t % 6; hi = sl // 3; so = (sl % 3) * 16384; par = t & 1
    o = []
    for s_ in range(2):
        o += [f"ds_read_b64_tr_b16 {v(WF[par]+s_*4+2*ee,2)}, v{WR[hi]} offset:{so+4096*s_+1024*ee}" for ee in range(2)]
        o += [f"ds_read_b128 {v(XF[par]+(s_*3+qb)*4,4)}, v{XR[hi][s_]} offset:{so+2048*qb}" for qb in range(3)]
    return o
def q_mfmas(t):
    par = t & 1
    return [mf(QACC+16*qb, WF[par]+s_*4, XF[par]+(s_*3+qb)*4, "0" if (t == 0 and s_ == 0) else None) for s_ in range(2) for qb in range(3)]
QD = 5
qpro = []
vm = VM()
for t in range(QD): qpro += q_issue(t); vm.issue(t, 4)
qb_ = [vm.wait(0)]
QST = {0: 1, 5: 2, 10: 3, 15: 7}
for t in range(NQ):
    qb_.append("s_barrier")
    if t in QST: qb_ += stampq(QST[t])
    rd = q_reads(t)
    iss = []
    if t + QD < NQ: iss = q_issue(t + QD); vm.issue(t + QD, 4)
    if t == 0:
        qb_ += rd + iss
    else:
        gaps = {-1: rd[:4]}
        spread(rd[4:], 0, 2, gaps)
        spread(iss, 2, 5, gaps)
        qb_ += interleave(q_mfmas(t - 1), gaps)
    if t + 1 < NQ:
        qb_.append(vm.wait(t + 1))
    qb_.append("s_waitcnt lgkmcnt(0)")
qb_ += q_mfmas(NQ - 1) + [f"s_mov_b32 s{sT0}, {fbits(CSC)}", f"s_add_u32 s{sT1}, s14, {GA}", f"v_add_u32 v6, s{sT1}, v1", f"v_add_u32 v7, s{sReg}, v1", "s_nop 5"]
for qb in range(3):
    for hf in range(2):
        src = QACC + 16 * qb + 8 * hf
        qb_ += [f"v_mul_f32 v{src+t}, s{sT0}, v{src+t}" for t in range(8)]
        dst = QB + (qb * 2 + hf) * 4
        qb_ += [f"v_cvt_pk_bf16_f32 v{dst+t}, v{src+2*t}, v{src+2*t+1}" for t in range(4)]
        qb_.append(f"ds_write_b128 v{6 if qb < 2 else 7}, {v(dst,4)} offset:{qb*8192 + hf*1024}")
qb_.append("s_waitcnt lgkmcnt(0)")
emit(g); emit(qpro); emit(gpro2)
A.label("L_gq")
emit(qb_)
I(f"s_cmp_lg_u32 s{sPass}, 0"); I("s_cbranch_scc1 L_go")
Q2P = eval(os.environ.get("Q2P", "[2,2,1]"))
Q2S = 1 + len(Q2P); assert sum(Q2P) == QD
I(f"s_mov_b32 s{sPass}, 1"); I(f"s_add_u32 s{sWb}, s{sWb}, 4096")
I("s_barrier")
t_ = 0
for n_ in Q2P:
    I("s_barrier")
    for _ in range(n_): emit(q_issue(t_)); t_ += 1
I("s_branch L_gq")
A.label("L_go")
I(f"s_cmp_ge_u32 s{sI}, 30"); I("s_cbranch_scc1 L_end")
emit(nonce_load)
emit(tail_addr_setup())
go = [f"s_mul_i32 s{sWb}, s12, {512*1280}", f"s_add_u32 s{sWb}, s{sWb}, s{sWOb}", f"s_lshl_b32 s{sXb}, s12, 15", f"s_add_u32 s{sXb}, s{sXb}, s{sOI}",
      f"s_lshl_b32 s{sHc}, s12, 2"] + poll_addr(3, sHc)
go += [f"s_mul_i32 s{sOb}, s{sWave}, {256*1280}", f"s_add_u32 s{sOb}, s{sOb}, s{sWOb}", f"s_add_u32 s{sOb}, s{sOb}, {2048*1280}"]
PS = env("PS", 6); LA = env("LA", 4); PL = env("PL", 2); R2 = env("R2", 28); OBG = 184; NSET = 7
R2L = eval(os.environ.get("R2L", "[]"))
vm = VM()
seq = [("W", c) for c in range(16)] + [("T", c) for c in (0, 1, 2, 3, 5, 6, 7)]
def wo_issue(ch, slot):
    vm.issue(ch, 4)
    return wo_dma(sWb if ch[0] == "W" else sOb, 32 * ch[1], ('s', slot * 4096))
w_iss = {}; w_rd = {}; o_iss = {}; mm_done = {}; fl_iss = {}; fl_ok = set()
nw = 0; nr = 0; no = 0; nm = 0; t4 = False
log = []
for S_ in range(Q2S + NQ, 2 * NA):
    go.append("s_barrier")
    a2 = S_ - NA
    body = []; lg = []
    do_m = nm < 16 and nm in o_iss and o_iss[nm] <= S_ - LA and nm in w_rd
    do_r = nr < 19 and nr in w_iss and w_iss[nr] <= S_ - LA and (nr < NSET or (nr - NSET) in mm_done or (do_m and nm == nr - NSET))
    if do_m and vm.has(("o", nm)): go.append(vm.wait(("o", nm)))
    if do_r and vm.has(seq[nr]): go.append(vm.wait(seq[nr]))
    rd = f_reads(nr % 4, (nr + 5) % NSET) if do_r else []
    early = do_r and not (do_m and nm == nr - NSET)
    if do_m:
        gaps = {}
        if early: spread(rd, -1, 2, gaps)
        go += interleave(o_mfmas((nm + 5) % NSET, nm % 4, first=(nm == 0), OB=OBG), gaps)
        if not early: go += rd
        mm_done[nm] = S_; lg.append(f"M{nm}"); nm += 1
    else:
        go += rd
    if do_r: w_rd[nr] = S_; lg.append(f"r{nr}"); nr += 1
    go.append("s_waitcnt lgkmcnt(0)")
    rate = 2 if (a2 >= R2 or S_ in R2L) else 1
    for _ in range(rate):
        can_w = nw < len(seq) and (nw < 4 or (nw - 4) in w_rd)
        can_o = no < 16 and a2 >= PS and (no < 4 or (no - 4) in mm_done) and (no // 4 in fl_ok or (no // 4 in fl_iss and fl_iss[no // 4] <= S_ - PL))
        if can_w and (not can_o or (nw < 16 and nw <= no + 2)):
            go += wo_issue(seq[nw], nw % 4); w_iss[nw] = S_; lg.append("w%s%d" % seq[nw]); nw += 1
        elif can_o:
            hd = no // 4
            if hd not in fl_ok:
                if vm.has(("f", hd)): go.append(vm.wait(("f", hd)))
                polln[0] += 1; n_ = polln[0]
                go += [f"s_mov_b32 s{sSpin}, 200000", f"L_poll{n_}:", f"v_cmp_ne_u32 vcc, s{sNonce}, v6", f"s_sub_u32 s{sSpin}, s{sSpin}, 1", f"s_cbranch_scc1 L_pd{n_}",
                       f"s_and_b32 s{sT0}, vcc_lo, {3 << (2 * hd)}", f"s_cbranch_scc0 L_pd{n_}",
                       f"buffer_load_dword v6, v{vPOLL}, {srd(rWS)}, 0 offen sc1", "s_waitcnt vmcnt(0)", f"s_branch L_poll{n_}", f"L_pd{n_}:"]
                fl_ok.add(hd); lg.append(f"P{hd}")
            go += o_loads(sXb, no, no % 4, OB=OBG); vm.issue(("o", no), 4); o_iss[no] = S_; lg.append(f"o{no}"); no += 1
        elif not t4 and a2 >= 1:
            go += wo_issue(("T", 4), 4); t4 = True; lg.append("wT4")
    hd = len(fl_iss)
    if hd < 4 and a2 >= PS - PL and len(fl_ok) == hd and no >= 4 * hd - PL:
        go.append(f"buffer_load_dword v6, v{vPOLL}, {srd(rWS)}, 0 offen sc1"); vm.issue(("f", hd)); fl_iss[hd] = S_; lg.append(f"f{hd}")
    assert len(vm.q) <= 63
    log.append(f"{S_}:" + ",".join(lg))
if flag("log"): print(" ".join(log))
assert nm == 16 and nr == 19 and nw == len(seq) and t4, (nm, nr, nw, t4)
go += tail_bases()
DUM = f"buffer_load_dword v7, v255, {srd(rDBG)}, 0 offen"
if flag("nowo") or flag("noo"): go = ["v_mov_b32 v255, 0x1000"] + go
if flag("nowo"): go = [DUM if (x.startswith("buffer_load") and srd(rWO) in x) else x for x in go]
if flag("noo"): go = [DUM if (x.startswith("buffer_load_dwordx4") and srd(rWS) in x) else x for x in go]
if flag("onosc"): go = [x.replace(" sc1", "") if x.startswith("buffer_load_dwordx4") else x for x in go]
if flag("ofake"): go = [x.replace(srd(rWS), srd(rK)) if x.startswith("buffer_load_dwordx4") else x for x in go]
if flag("wofake"): go = [x.replace(f"dwordx4 v{vWD},", "dwordx4 v1,") for x in go]
if flag("nord"): go = [x for x in go if not x.startswith("ds_read")]
if flag("nomm"): go = [x for x in go if not x.startswith("v_mfma")]
go += ["s_barrier", "s_branch L_tail"]
emit(go)
errs += check_hazards(g + qpro + gpro2 + qb_ + qpro + qb_[:60], "G")
errs += check_hazards(tail_addr_setup() + go, "Go")

A.label("L_ld")
I("s_setprio 3")
for p in range(2):
    I(f"s_lshl_b32 s{sKV+p}, s{sB}, 5"); I(f"s_add_u32 s{sKV+p}, s{sKV+p}, s{sH}")
    if p: I(f"s_add_u32 s{sKV+p}, s{sKV+p}, 16")
    I(f"s_lshl_b32 s{sKV+p}, s{sKV+p}, 18")
I("v_lshrrev_b32 v6, 4, v0")
I("v_and_b32 v7, 15, v0"); I("v_xor_b32 v7, v7, v6"); I("v_lshlrev_b32 v7, 4, v7"); I("v_lshl_add_u32 v248, v6, 8, v7")
for j in range(1, 4): I(f"v_xor_b32 v{248+j}, {64*j}, v248")
I("v_lshlrev_b32 v7, 2, v6"); I("v_and_b32 v5, 15, v0"); I("v_xor_b32 v7, v7, v5"); I("v_lshlrev_b32 v7, 4, v7"); I("v_lshl_add_u32 v252, v6, 8, v7")
I("v_mov_b32 v253, 0")
vm = VM()
emit(tail_addr_setup())
if env("TW", 0):
    for r_ in (rK, rV): I(f"buffer_load_dword v247, v253, {srd(r_)}, s{sKV} offen"); vm.issue("tw")
def kv_issue(kind, it):
    p, t = divmod(it, 32)
    base = (KRING if kind == "K" else VRING) + (t % 4) * 8192
    o = []
    for half in range(2):
        o += [f"s_mov_b32 m0, {base + 4096*half}", f"s_add_u32 s{sT0}, s{sKV+p}, {t*8192 + 4096*half}"]
        for i in range(4):
            vo = 248 + i if kind == "K" else 252
            o.append(f"buffer_load_dwordx4 v{vo}, {srd(rK if kind=='K' else rV)}, s{sT0} offen offset:{1024*i} nt lds")
    vm.issue((kind, it), 8)
    if flag("noload"): return []
    return o
def use_step(kind, it):
    p, t = divmod(it, 32)
    return NQ + NA * p + t + (0 if kind == "K" else 1)
NS = NQ + 2 * NA
init = eval(os.environ.get("KVINIT", "[-1,15,15,16,16,17,18,19]"))
order = [("K",0),("V",0),("K",1),("V",1),("K",2),("V",2),("K",3),("V",3)]
sched = {}
for st_, it in zip(init, order): sched.setdefault(st_, []).append(it)
for it in range(4, 64):
    for kind in "KV": sched.setdefault(use_step(kind, it - 4) + 1, []).append((kind, it))
def free_step(addr):
    if addr < VRING: return use_step("K", 60 + addr // 8192) + 1
    if addr < GA: return use_step("V", 60 + (addr - VRING) // 8192) + 1
    return NQ + NA + 27
for r in range(4):
    for c in range(5):
        ad = r * REG + c * 4096
        sched.setdefault(free_step(ad), []).append(("W", r, c))
lastkv = max(s_ for s_, l in sched.items() if any(x[0] != "W" for x in l))
CAP = env("CAP", 63)
def do_issue(st_):
    for it in sched.get(st_, []):
        n = 4 if it[0] == "W" else 8
        if len(vm.q) + n > CAP:
            I(f"s_waitcnt vmcnt({CAP - n})"); vm.q = vm.q[len(vm.q) - (CAP - n):]
        if it[0] == "W":
            _, r, c = it
            emit(wo_dma(sWOb, 2048 + 256 * r + 32 * c, ('c', r * REG + c * 4096))); vm.issue(it, 4)
        else:
            emit(kv_issue(*it))
        assert len(vm.q) <= 63, (st_, len(vm.q))
do_issue(-1)
for st_ in range(NS):
    I("s_barrier")
    if st_ == NQ + NA + 27:
        pass
    do_issue(st_)
    need = [(k, it) for k in "KV" for it in range(64) if use_step(k, it) == st_ + 1 and vm.has((k, it))]
    if need:
        last = max(need, key=lambda t: max(i for i, x in enumerate(vm.q) if x == t))
        I(vm.wait(last))
I(f"s_cmp_ge_u32 s{sI}, 30"); I("s_cbranch_scc1 L_end")
lt = nonce_load + tail_bases() + zero_acc() + ["s_waitcnt vmcnt(0)", "s_barrier"] + tail_pre_reads() + tail_refill()
emit(lt)

tl = ["L_tail:"] + poll() + stamp(4)
vm = VM()
for c in range(8): tl += o_loads(sXb, c, c); vm.issue(c, 4)
for c in range(8):
    tl.append(vm.wait(c))
    if c >= 3: tl.append(f"s_waitcnt lgkmcnt({8 if c < 7 else 0})" if c >= 3 else "")
    tl += o_mfmas(c % 3, c)
    if c + 3 < 8: tl += f_reads((c + 3) % 5, c % 3)
tl = [x for x in tl if x]
tl += stamp(5)
tl += [f"v_add_u32 v6, s{sReg}, v1", "s_nop 7", "s_nop 2"]
for q in range(16): tl.append(f"ds_write_b128 v6, {v(ACC+4*q,4)} offset:{q*1024}")
tl += [f"s_lshl_b32 s{sT0}, s{sWave}, 11", f"v_add_u32 v2, s{sT0}, v1", f"v_add_u32 v3, {3*REG}, v2", f"v_add_u32 v4, {6*REG}, v2"]
tl += [f"s_lshl_b32 s{sT0}, s{sMt}, 1", f"s_lshr_b32 s{sT1}, s{sWave}, 2", f"s_add_u32 s{sT0}, s{sT0}, s{sT1}", f"s_mul_i32 s{sT0}, s{sT0}, 81920",
       f"s_mul_i32 s{sT1}, s{sBr}, 1280", f"s_add_u32 s{sT0}, s{sT0}, s{sT1}", f"s_add_u32 s{sT0}, s{sT0}, s{sWOb}",
       f"s_and_b32 s{sT1}, s{sWave}, 3", f"s_lshl_b32 s{sT1}, s{sT1}, 5", f"s_add_u32 s{sT0}, s{sT0}, s{sT1}",
       "v_and_b32 v6, 31, v0", "v_mul_u32_u24 v6, 2560, v6", "v_lshrrev_b32 v7, 5, v0", "v_lshl_add_u32 v5, v7, 4, v6"]
tl += ["s_waitcnt lgkmcnt(0)", "s_barrier"]
for r in range(8):
    for j in range(2):
        if r == 7 and j == 1: tl.append("s_waitcnt lgkmcnt(14)")
        tl.append(f"ds_read_b128 {v(OB+8*r+4*j,4)}, v{2 + r//3} offset:{(r%3)*REG + j*1024}")
for r in range(1, 8):
    tl.append(f"s_waitcnt lgkmcnt({14 - 2*r})")
    tl += [f"v_add_f32 v{OB+i}, v{OB+i}, v{OB+8*r+i}" for i in range(8)]
tl += [f"v_cvt_pk_bf16_f32 v{ACC+i}, v{OB+2*i}, v{OB+2*i+1}" for i in range(4)]
tl += [f"buffer_store_dwordx4 {v(ACC,4)}, v5, {srd(rOUT)}, s{sT0} offen"]
tl += stamp(6)
tl += ["L_end:", "s_endpgm"]
emit(tl)
errs += check_hazards(lt + tl, "T")
for x in errs: print(x)
assert not errs

A.raw('.section .rodata,"a"')
A.raw(".p2align 6")
A.raw(f".amdhsa_kernel {NAME}")
for l in ("next_free_vgpr 256", "next_free_sgpr 96", "accum_offset 256", "group_segment_fixed_size 0", "kernarg_size 104",
          "user_sgpr_count 2", "user_sgpr_kernarg_segment_ptr 1", "system_sgpr_workgroup_id_x 1"):
    A.raw("  .amdhsa_" + l)
A.raw(".end_amdhsa_kernel")
open(out_path, "w").write(A.text())
```

```python
import sys, math, struct, os
from asmlib import *

ARGS = sys.argv[1:]
def flag(x): return ("--" + x) in ARGS
def env(x, d): return int(os.environ.get(x, str(d)))
out_path = [x for x in ARGS if not x.startswith("--")][0]
NAME = "concat_heads__gqa_block_cached__mha_block_cached__near_ridge_kernel"
ST = flag("stamp")

def fbits(x): return "0x%08x" % struct.unpack("<I", struct.pack("<f", x))[0]
CSC = (128 ** -0.5) * math.log2(math.e)
LTHR = float(2 ** env("LTHR", 20))

A = Asm()
hdr = open("concat_heads__gqa_block_cached__mha_block_cached__near_ridge.s.ref").read().split("\n")
for l in hdr:
    if l.startswith("; @launch"): A.raw("; @launch grid=(256,1,1) block=(512,1,1) lds=163840")
    elif l.startswith(";"): A.raw(l)
    else: break
A.raw('.amdgcn_target "amdgcn-amd-amdhsa--gfx950"')
A.raw(".text")
A.raw(f".globl {NAME}"); A.raw(".p2align 8"); A.raw(f".type {NAME},@function"); A.label(NAME)
I = A.i
def emit(lst):
    for x in lst:
        if x.endswith(":"): A.raw(x)
        else: I(x)

KRING = 0; VRING = 32768; GA = 65536; HAND = GA + 2 * 16384; REG = 20480
FLAGB = 12582912; WSN = FLAGB + 1536 * 128 + (65536 if ST else 0); STB = FLAGB + 1536 * 128
NQ = 20; NA = 34
sWave = 4; sBr = 5; sB = 6; sH = 7; sMt = 8; sNt = 9; sI = 10; sReg = 11
rX = 44; rW = 48; rK = 52; rV = 56; rWO = 60; rWS = 64; rOUT = 68; rDBG = 72
sNonce = 76; sT0 = 77; sT1 = 78; sCnt = 79; sPass = 80; sThr = 81; sKV = 82; sXb = 84; sWb = 85; sOb = 86; sOb2 = 87
sWOb = 88; sOI = 89; sSpin = 90; sHc = 91
def srd(r): return f"s[{r}:{r+3}]"

I("s_cmp_ge_u32 s2, 256"); I("s_cbranch_scc1 L_end")
I("s_load_dwordx16 s[16:31], s[0:1], 0")
I("s_load_dwordx8 s[32:39], s[0:1], 64")
I("s_load_dwordx2 s[40:41], s[0:1], 96")
if ST: I("s_memrealtime s[92:93]")
I("v_lshrrev_b32 v1, 6, v0")
I("v_and_b32 v0, 63, v0")
I("s_and_b32 s3, s2, 7")
I(f"v_readfirstlane_b32 s{sWave}, v1")
I(f"s_lshr_b32 s{sI}, s2, 3")
I(f"s_and_b32 s{sBr}, s3, 1")
I("s_lshr_b32 s3, s3, 1")
I(f"s_lshr_b32 s{sB}, s{sI}, 2")
I(f"s_add_u32 s{sH}, s{sI}, {env('HROT', 0)}"); I(f"s_and_b32 s{sH}, s{sH}, 3"); I(f"s_lshl_b32 s12, s3, 3"); I(f"s_add_u32 s{sH}, s{sH}, s12")
if env("MAP", 1) == 0:
    I(f"s_mul_i32 s12, s{sI}, 26"); I("s_lshr_b32 s12, s12, 8")
    I(f"s_mul_i32 s13, s12, 10"); I(f"s_sub_u32 s{sNt}, s{sI}, s13")
    I(f"s_mul_i32 s{sMt}, s3, 3"); I(f"s_add_u32 s{sMt}, s{sMt}, s12")
else:
    I(f"s_mul_i32 s12, s{sI}, 52"); I("s_lshr_b32 s12, s12, 8")
    I(f"s_mul_i32 s13, s12, 5"); I(f"s_sub_u32 s{sNt}, s{sI}, s13")
    I("s_and_b32 s13, s3, 1"); I("s_mul_i32 s13, s13, 5"); I(f"s_add_u32 s{sNt}, s{sNt}, s13")
    I("s_lshr_b32 s13, s3, 1"); I(f"s_mul_i32 s{sMt}, s13, 6"); I(f"s_add_u32 s{sMt}, s{sMt}, s12")
I(f"s_mul_i32 s{sReg}, s{sWave}, {REG}")
I("v_lshlrev_b32 v1, 4, v0")
for r, n in ((rX, 983040), (rW, 5242880), (rK, 67108864), (rV, 67108864), (rWO, 5242880), (rWS, WSN), (rOUT, 1966080), (rDBG, 256)):
    I(f"s_mov_b32 s{r+2}, {n}"); I(f"s_mov_b32 s{r+3}, 0x20000")
I(f"s_mul_i32 s{sOI}, s{sBr}, 12"); I(f"s_add_u32 s{sOI}, s{sOI}, s{sMt}"); I(f"s_lshl_b32 s{sOI}, s{sOI}, 19")
I(f"s_lshl_b32 s{sWOb}, s{sNt}, 7")
I("s_waitcnt lgkmcnt(0)")
I(f"s_cmp_eq_u32 s{sBr}, 0")
for r, a_, b_ in ((rX, 16, 26), (rK, 18, 28), (rV, 20, 30), (rW, 22, 32), (rWO, 24, 34)):
    I(f"s_cselect_b32 s{r}, s{a_}, s{b_}"); I(f"s_cselect_b32 s{r+1}, s{a_+1}, s{b_+1}")
for r, a_ in ((rOUT, 36), (rDBG, 38), (rWS, 40)):
    I(f"s_mov_b32 s{r}, s{a_}"); I(f"s_mov_b32 s{r+1}, s{a_+1}")
if ST:
    I(f"s_lshl_b32 s93, s2, 3"); I(f"s_add_u32 s93, s93, s{sWave}"); I("s_lshl_b32 s93, s93, 5"); I(f"s_add_u32 s93, s93, {STB}")
    I("v_mov_b32 v254, s92"); I("v_mov_b32 v255, 0"); I(f"buffer_store_dword v254, v255, {srd(rWS)}, s93 offen")
I(f"s_cmp_eq_u32 s{sWave}, 3"); I("s_cbranch_scc1 L_ld")
I(f"s_cmp_gt_u32 s{sWave}, 3"); I("s_cbranch_scc1 L_g")

def mf(d, a_, b_, c=None):
    cc = v(d, 16) if c is None else c
    return f"v_mfma_f32_32x32x16_bf16 {v(d,16)}, {v(a_,4)}, {v(b_,4)}, {cc}"
def spread(ops, g0, g1, gaps):
    n = g1 - g0 + 1
    for k in range(n):
        lo = len(ops) * k // n; hi = len(ops) * (k + 1) // n
        gaps.setdefault(g0 + k, []).extend(ops[lo:hi])
class VM:
    def __init__(self): self.q = []
    def issue(self, tag, n=1): self.q += [tag] * n
    def wait(self, tag):
        idx = max(i for i, t in enumerate(self.q) if t == tag)
        n = len(self.q) - 1 - idx
        assert n <= 63, n
        self.q = self.q[idx + 1:]
        return f"s_waitcnt vmcnt({n})"
    def has(self, tag): return tag in self.q
    def drain(self): self.q = []
stampn = [0]
def stampq(k):
    o = stamp(k)
    if not o: return o
    return [f"s_cmp_lg_u32 s{sPass}, {env('STP', 0)}", "s_cbranch_scc1 " + o[-1][:-1]] + o
def stamp(k):
    if not ST: return []
    stampn[0] += 1
    lab = f"L_st{stampn[0]}"
    return ["s_nop 0", f"s_cbranch_scc1 {lab}", "s_memrealtime s[94:95]", "s_waitcnt lgkmcnt(0)",
            "v_mov_b32 v254, s94", "v_mov_b32 v255, 0", f"buffer_store_dword v254, v255, {srd(rWS)}, s93 offen offset:{4*k}", f"{lab}:"][2:]

ACC = 8; FB = [72, 88, 104]; OB = 120
vWD = 2; vTR = [3, 4]; vPOLL = 5
def tail_addr_setup():
    o = []
    e = o.append
    e("v_lshrrev_b32 v6, 3, v0"); e("v_lshrrev_b32 v7, 2, v0"); e("v_and_b32 v7, 4, v7"); e(f"v_and_b32 v{vWD}, 7, v0"); e(f"v_xor_b32 v7, v7, v{vWD}")
    e(f"v_mul_u32_u24 v{vWD}, 1280, v6"); e(f"v_lshl_add_u32 v{vWD}, v7, 4, v{vWD}")
    e("v_lshrrev_b32 v6, 2, v0"); e("v_and_b32 v6, 3, v6")
    e("v_lshrrev_b32 v3, 4, v0"); e("v_and_b32 v3, 1, v3"); e("v_lshlrev_b32 v3, 5, v3")
    e("v_and_b32 v7, 1, v0"); e("v_lshl_add_u32 v3, v7, 4, v3"); e("v_and_b32 v7, 2, v0"); e("v_lshl_add_u32 v3, v7, 2, v3")
    e("v_lshl_add_u32 v3, v6, 7, v3"); e("v_lshrrev_b32 v6, 1, v6"); e("v_lshl_add_u32 v3, v6, 6, v3")
    e("v_lshrrev_b32 v7, 5, v0"); e("v_lshl_add_u32 v3, v7, 10, v3")
    e(f"v_add_u32 v3, s{sReg}, v3"); e("v_xor_b32 v4, 64, v3")
    return o
def wo_dma(sbase, krow, m0):
    o = [f"s_add_u32 m0, s{sReg}, {m0[1]}" if m0[0] == 's' else f"s_mov_b32 m0, {m0[1]}"]
    for i in range(4):
        o.append(f"s_add_u32 s{sT0}, s{sbase}, {(krow + 8*i)*1280 - 1024*i}")
        o.append(f"buffer_load_dwordx4 v{vWD}, {srd(rWO)}, s{sT0} offen offset:{1024*i} lds")
    return o
def o_loads(sbase, c, buf, OB=OB):
    o = []
    for mb in range(2):
        o.append(f"s_add_u32 s{sT0}, s{sbase}, {mb*262144 + c*2048}")
        for s_ in range(2):
            o.append(f"buffer_load_dwordx4 {v(OB+buf*16+(mb*2+s_)*4,4)}, v1, {srd(rWS)}, s{sT0} offen offset:{1024*s_}" + os.environ.get("OM", " sc1").replace("_", " "))
    return o
def f_reads(slot, fb):
    b = FB[0] + 16 * fb
    return [f"ds_read_b64_tr_b16 {v(b+(s_*2+w)*4+2*ee,2)}, v{vTR[w]} offset:{slot*4096+2048*s_+512*ee}" for s_ in range(2) for w in range(2) for ee in range(2)]
def o_mfmas(fb, buf, first=False, OB=OB):
    b = FB[0] + 16 * fb
    return [mf(ACC+16*(mb*2+w), b+(s_*2+w)*4, OB+buf*16+(mb*2+s_)*4, "0" if (first and s_ == 0) else None) for s_ in range(2) for mb in range(2) for w in range(2)]
polln = [0]
def poll():
    polln[0] += 1
    n = polln[0]
    return [f"s_mov_b32 s{sSpin}, 200000", f"L_poll{n}:",
            f"buffer_load_dword v6, v{vPOLL}, {srd(rWS)}, 0 offen sc1", f"s_sub_u32 s{sSpin}, s{sSpin}, 1", "s_waitcnt vmcnt(0)",
            f"v_cmp_ne_u32 vcc, s{sNonce}, v6", f"s_cbranch_vccz L_pd{n}", f"s_cmp_lg_u32 s{sSpin}, 0", f"s_cbranch_scc1 L_poll{n}", f"L_pd{n}:"]
def poll_addr(nh_mask, sHead0):
    return [f"s_lshr_b32 s{sT0}, s{sOI}, 6", f"s_lshl_b32 s{sT1}, s{sHead0}, 7", f"s_add_u32 s{sT0}, s{sT0}, s{sT1}", f"s_add_u32 s{sT0}, s{sT0}, {FLAGB}",
            f"v_and_b32 v{vPOLL}, 1, v0", f"v_lshlrev_b32 v{vPOLL}, 12, v{vPOLL}", "v_lshrrev_b32 v6, 1, v0", f"v_and_b32 v6, {nh_mask}, v6",
            f"v_lshl_add_u32 v{vPOLL}, v6, 7, v{vPOLL}", f"v_add_u32 v{vPOLL}, s{sT0}, v{vPOLL}"]
def k0_of(w): return 1024 * (w >> 1) + 512 + 256 * (w & 1)
def tail_h0(dst):
    return [f"s_lshr_b32 s{dst}, s{sWave}, 1", f"s_lshl_b32 s{dst}, s{dst}, 1", f"s_add_u32 s{dst}, s{dst}, s{sWave}", f"s_lshl_b32 s{dst}, s{dst}, 1", f"s_add_u32 s{dst}, s{dst}, 4"]
def tail_bases():
    return tail_h0(sHc) + [f"s_mul_i32 s{sWb}, s{sHc}, {128*1280}", f"s_add_u32 s{sWb}, s{sWb}, s{sWOb}",
            f"s_lshl_b32 s{sXb}, s{sHc}, 13", f"s_add_u32 s{sXb}, s{sXb}, s{sOI}"] + poll_addr(1, sHc)
def tail_pre_reads():
    return f_reads(0, 0) + f_reads(1, 1)[:7] + ["s_waitcnt lgkmcnt(7)"] + f_reads(1, 1)[7:] + f_reads(2, 2)[:7] + ["s_waitcnt lgkmcnt(7)"] + f_reads(2, 2)[7:] + ["s_waitcnt lgkmcnt(0)"]
def tail_refill():
    return wo_dma(sWb, 160, ('s', 0)) + wo_dma(sWb, 192, ('s', 4096)) + wo_dma(sWb, 224, ('s', 8192))
def zero_acc(): return [f"v_mov_b32 v{ACC+i}, 0" for i in range(64)]

Q=8; O=40; S=[104,120]; P=[136,144]; KF=152; VF=184; NEGM=216; KST=232; VST=240; LS=[244,246]; TT=248
F=2; D=3; T0=4; T1=5
pro = []
e = pro.append
e("s_setprio %d" % env("PRIOC", 2))
e(f"s_mov_b32 s{sThr}, {fbits(LTHR)}"); e(f"s_mov_b32 s{sPass}, 0"); e(f"s_mov_b32 s{sHc}, s{sH}")
e("v_and_b32 v2, 31, v0"); e("v_lshrrev_b32 v3, 5, v0")
e("v_and_b32 v4, 15, v2"); e("v_xor_b32 v4, v4, v3"); e("v_lshlrev_b32 v4, 4, v4"); e("v_lshl_add_u32 v4, v2, 8, v4")
for s_ in range(8): e(f"v_xor_b32 v{KST+s_}, {32*s_}, v4")
e("v_lshrrev_b32 v2, 2, v0"); e("v_and_b32 v2, 3, v2")
e("v_lshrrev_b32 v4, 4, v0"); e("v_and_b32 v4, 1, v4"); e("v_lshlrev_b32 v4, 5, v4")
e("v_and_b32 v5, 1, v0"); e("v_lshl_add_u32 v4, v5, 4, v4"); e("v_and_b32 v5, 2, v0"); e("v_lshl_add_u32 v4, v5, 2, v4")
e("v_lshl_add_u32 v4, v2, 8, v4"); e("v_lshl_add_u32 v4, v2, 6, v4"); e("v_lshl_add_u32 v4, v3, 10, v4")
for w in range(4): e(f"v_xor_b32 v{VST+w}, {64*w}, v4")

PFD = env("PFD", 0); PFS = env("PFS", 64); PFA = env("PFA", 0); PFR = env("PFR", 1); PFM = os.environ.get("PFM", "")
rPF = rX; sIt = sKV; sPo = sKV + 1
if PFD:
    e(f"s_cmp_eq_u32 s{sWave}, 0")
    e(f"s_cselect_b32 s{rPF}, s{rK}, s{rV}"); e(f"s_cselect_b32 s{rPF+1}, s{rK+1}, s{rV+1}")
    e(f"s_cmp_lt_u32 s{sWave}, 2"); e(f"s_cselect_b32 s{rPF+2}, s{rK+2}, 0")
    e(f"s_lshl_b32 s{sPo}, s{sB}, 5"); e(f"s_add_u32 s{sPo}, s{sPo}, s{sH}"); e(f"s_lshl_b32 s{sPo}, s{sPo}, 18"); e(f"s_add_u32 s{sPo}, s{sPo}, {4*8192}")
    e(f"s_mov_b32 s{sSpin}, 8192"); e(f"s_mov_b32 s{sIt}, 4"); e(f"v_lshlrev_b32 v7, {int(math.log2(PFS))}, v0")
def pf_ops():
    if not PFD: return []
    o = [f"buffer_load_dword v6, v7, {srd(rPF)}, s{sPo} offen {PFM}"]
    if PFS == 64: o += [f"s_add_u32 s{sT1}, s{sPo}, 4096", f"buffer_load_dword v6, v7, {srd(rPF)}, s{sT1} offen {PFM}"]
    o += [f"s_add_u32 s{sIt}, s{sIt}, 1", f"s_cmp_eq_u32 s{sIt}, 32", f"s_cselect_b32 s{sT1}, {8192+15*262144}, s{sSpin}", f"s_add_u32 s{sPo}, s{sPo}, s{sT1}",
          f"s_cmp_ge_u32 s{sIt}, 64", f"s_cselect_b32 s{rPF+2}, 0, s{rPF+2}"]
    return o
def k_reads(slot): return [f"ds_read_b128 {v(KF+4*s_,4)}, v{KST+s_} offset:{KRING+8192*slot}" for s_ in range(8)]
def v_reads(slot, kb):
    return [f"ds_read_b64_tr_b16 {v(VF+(kb*4+w)*4+2*ee,2)}, v{VST+w} offset:{VRING+8192*slot+4096*kb+2048*ee}" for w in range(4) for ee in range(2)]
def qk_mfmas(par, c0): return [mf(S[par], KF+4*s_, Q+4*s_, c0 if s_ == 0 else None) for s_ in range(8)]
def pv_mfmas(par): return [mf(O+16*w, VF+(kb*4+w)*4, P[par]+4*kb) for kb in range(2) for w in range(4)]
def max_ops(sb):
    return [f"v_max3_f32 v{T0}, v{sb}, v{sb+1}, v{sb+2}", f"v_max3_f32 v{T1}, v{sb+3}, v{sb+4}, v{sb+5}",
            f"v_max3_f32 v{T0}, v{T0}, v{sb+6}, v{sb+7}", f"v_max3_f32 v{T1}, v{T1}, v{sb+8}, v{sb+9}",
            f"v_max3_f32 v{T0}, v{T0}, v{sb+10}, v{sb+11}", f"v_max3_f32 v{T1}, v{T1}, v{sb+12}, v{sb+13}",
            f"v_max3_f32 v{T0}, v{T0}, v{sb+14}, v{sb+15}", f"v_max_f32 v{T0}, v{T0}, v{T1}",
            f"v_mov_b32 v{T1}, v{T0}", "s_nop 1", f"v_permlane32_swap_b32 v{T0}, v{T1}", "s_nop 0", f"v_max_f32 v{D}, v{T0}, v{T1}"]
def sm_ops(sp, lold=None):
    sb = S[sp]; pb = P[sp]; ln = LS[sp]
    o = []
    for i in range(16 + 2):
        if i < 16: o.append(f"v_exp_f32 v{TT+(i&7)}, v{sb+i}")
        j = i - 2
        if 0 <= j < 16:
            if j < 2:
                o.append(f"v_mov_b32 v{ln+j}, v{TT+j}" if lold is None else f"v_add_f32 v{ln+j}, v{lold+j}, v{TT+j}")
            else:
                o.append(f"v_add_f32 v{ln+(j&1)}, v{ln+(j&1)}, v{TT+(j&7)}")
            if j & 1: o.append(f"v_cvt_pk_bf16_f32 v{pb+(j>>1)}, v{TT+((j-1)&7)}, v{TT+(j&7)}")
    return o
ool = []
site = [0]
def rare_block(n, par, qk):
    sp = 1 - par
    o = [f"L_rare{n}:"] + max_ops(S[sp]) + [f"v_max_f32 v{D}, 0, v{D}", f"v_exp_f32 v{F}, -v{D}"]
    o += [f"v_sub_f32 v{S[sp]+i}, v{S[sp]+i}, v{D}" for i in range(16)]
    o += [f"v_mul_f32 v{LS[par]+j}, v{LS[par]+j}, v{F}" for j in range(2)]
    o += sm_ops(sp, LS[par])
    if qk: o += [f"v_sub_f32 v{S[par]+i}, v{S[par]+i}, v{D}" for i in range(16)]
    o += [f"v_sub_f32 v{NEGM+i}, v{NEGM+i}, v{D}" for i in range(16)]
    o += [f"v_mul_f32 v{O+i}, v{O+i}, v{F}" for i in range(64)]
    o += [f"s_branch L_back{n}"]
    return o
def at_step(a, qk=True, extra=None):
    par = a & 1
    n = site[0]; site[0] += 1
    o = ["s_barrier"]
    mm = pv_mfmas(par) + (qk_mfmas(par, v(NEGM, 16)) if qk else [])
    kr = k_reads(a % 4) if qk else []
    vs = (a - 1) % 4
    gaps = {}
    if qk:
        gaps[-1] = kr[:2]
        spread(kr[2:], 0, 2, gaps)
        if env("PFSS", 1): spread(pf_ops(), 0, 1, gaps)
        sm = sm_ops(1 - par, LS[par])
        spread(sm, 2, 14, gaps)
        spread(v_reads(vs, 0), 4, 7, gaps)
        gaps[7].append("s_waitcnt lgkmcnt(8)")
        spread(v_reads(vs, 1), 8, 11, gaps)
    else:
        gaps[-1] = ["s_nop 5"]
        sm = sm_ops(1 - par, LS[par])
        spread(sm, 2, 7, gaps)
        spread(v_reads(vs, 0), 4, 6, gaps)
        gaps[7] = v_reads(vs, 1) + gaps[7]
    last = len(mm) - 1
    ln = LS[1 - par]
    chk = [f"v_max_f32 v{T0}, v{ln}, v{ln+1}", f"v_cmp_lt_f32 vcc, s{sThr}, v{T0}"]
    gaps.setdefault(last, []).extend(chk + (extra or []) + [f"s_cbranch_vccnz L_rare{n}", f"L_back{n}:"])
    ool.append(rare_block(n, par, qk))
    o += interleave(mm, gaps)
    o.append("s_waitcnt lgkmcnt(0)")
    return o
def at_step0():
    o = [f"s_lshl_b32 s{sT0}, s{sWave}, 13", f"s_add_u32 s{sT0}, s{sT0}, {GA}", f"s_mov_b32 s{sT1}, 2048", f"s_cmp_eq_u32 s{sWave}, 2",
         f"s_cselect_b32 s{sT0}, {4*REG+16384}, s{sT0}", f"s_cselect_b32 s{sT1}, {REG}, s{sT1}", f"v_add_u32 v{TT}, s{sT0}, v1"]
    o += [f"v_add_u32 v{TT+j+1}, s{sT1}, v{TT+j}" for j in range(3)] + ["s_barrier"]
    kr = k_reads(0)
    qr = [f"ds_read_b128 {v(Q+4*s_,4)}, v{TT+(s_>>1)} offset:{1024*(s_&1)}" for s_ in range(8)]
    for s_ in range(7): o += [qr[s_], kr[s_]]
    o += [qr[7], "s_waitcnt lgkmcnt(13)", kr[7]]
    mm = qk_mfmas(0, "0")
    gaps = {}
    for k in range(7): gaps[k] = [f"s_waitcnt lgkmcnt({max(0, 12-2*k)})"]
    zs = [f"v_mov_b32 v{O+i}, 0" for i in range(64)]
    spread(zs, 0, 7, gaps)
    for k in range(7): gaps[k] = gaps[k][1:] + gaps[k][:1]
    o += interleave(mm, gaps)
    return o
def at_step1(extra):
    o = ["s_barrier"] + k_reads(1) + v_reads(0, 0)[:6] + extra
    o += max_ops(S[0])
    o += [f"v_sub_f32 v{NEGM+i}, 0, v{D}" for i in range(16)]
    o += ["s_waitcnt lgkmcnt(6)", "s_nop 0"]
    mm = qk_mfmas(1, v(NEGM, 16))
    gaps = {}
    ops = [f"v_sub_f32 v{S[0]+i}, v{S[0]+i}, v{D}" for i in range(16)] + sm_ops(0, None)
    spread(ops, 0, 7, gaps)
    gaps[0] = v_reads(0, 0)[6:] + gaps[0]
    gaps[1] = v_reads(0, 1)[:4] + gaps[1]
    gaps[2] = v_reads(0, 1)[4:] + gaps[2]
    o += interleave(mm, gaps) + ["s_waitcnt lgkmcnt(0)"]
    return o
NLDS = 7 * REG + 18432
n_rd = [f"v_mov_b32 v7, {NLDS}", "ds_read_b32 v7, v7"]
n_get = [f"v_readfirstlane_b32 s{sNonce}, v7"]
def n_iss(r): return [f"buffer_load_dword v{r}, off, {srd(rDBG)}, 0 sc1"]
def n_fin(r):
    polln[0] += 1
    n = polln[0]
    return [f"s_mov_b32 s{sSpin}, 200000", f"L_n{n}:", f"v_readfirstlane_b32 s{sNonce}, v{r}", f"s_cmp_lg_u32 s{sNonce}, 0", f"s_cbranch_scc1 L_nd{n}",
            f"s_sub_u32 s{sSpin}, s{sSpin}, 1", f"s_cbranch_scc1 L_nd{n}"] + n_iss(r) + ["s_waitcnt vmcnt(0)", f"s_branch L_n{n}", f"L_nd{n}:"]
def at_last():
    L0 = LS[1]; L1 = LS[1] + 1
    o = ["s_barrier"] + n_rd + pv_mfmas(1)
    o += [f"v_add_f32 v{L0}, v{L0}, v{L1}", f"v_mov_b32 v{L1}, v{L0}", "s_nop 1", f"v_permlane32_swap_b32 v{L0}, v{L1}", "s_nop 0",
          f"v_add_f32 v{L0}, v{L0}, v{L1}", f"v_rcp_f32 v{L0}, v{L0}"]
    o += [f"s_mul_i32 s{sOb}, s{sBr}, 24", f"s_mul_i32 s{sOb2}, s{sB}, 3", f"s_add_u32 s{sOb}, s{sOb}, s{sOb2}", f"s_add_u32 s{sOb}, s{sOb}, s{sWave}",
          f"s_lshl_b32 s{sOb}, s{sOb}, 5", f"s_add_u32 s{sOb}, s{sOb}, s{sHc}", f"s_lshl_b32 s{sOb}, s{sOb}, 13", f"s_add_u32 s{sOb2}, s{sOb}, 4096", "s_nop 1"]
    for s_ in range(8):
        src = O + 16 * (s_ >> 1) + 8 * (s_ & 1)
        for t in range(8): o.append(f"v_mul_f32 v{src+t}, v{src+t}, v{L0}")
        for t in range(4): o.append(f"v_cvt_pk_bf16_f32 v{VF+4*s_+t}, v{src+2*t}, v{src+2*t+1}")
        o.append(f"buffer_store_dwordx4 {v(VF+4*s_,4)}, v1, {srd(rWS)}, s{sOb if s_<4 else sOb2} offen offset:{1024*(s_&3)} sc1")
    return o + ["s_waitcnt lgkmcnt(0)"]
def flag_store():
    return ["s_waitcnt vmcnt(0)"] + [f"s_lshr_b32 s{sT0}, s{sOb}, 6", f"s_add_u32 s{sT0}, s{sT0}, {FLAGB}", f"v_mov_b32 v{TT}, s{sNonce}", f"v_mov_b32 v{TT+1}, 0",
            "s_mov_b64 exec, 1", f"buffer_store_dword v{TT}, v{TT+1}, {srd(rWS)}, s{sT0} offen sc1", "s_mov_b64 exec, -1"]
def bar_loop(n, lab):
    return [f"s_mov_b32 s{sCnt}, {n}", f"{lab}:", "s_barrier", f"s_sub_u32 s{sCnt}, s{sCnt}, 1", f"s_cmp_lg_u32 s{sCnt}, 0", f"s_cbranch_scc1 {lab}"]

vXD = [8, 9]; vWq = 10
XS = [GA + 81920, KRING + 16384, VRING + 16384]
qset = []
e = qset.append
e(f"s_mov_b32 s12, s{sWave}")
e("v_lshrrev_b32 v6, 4, v0"); e("v_and_b32 v7, 7, v0"); e("v_xor_b32 v7, v7, v6"); e("v_lshlrev_b32 v7, 4, v7")
e(f"v_lshrrev_b32 v{vXD[0]}, 3, v0"); e(f"v_mul_u32_u24 v{vXD[0]}, 1280, v{vXD[0]}"); e(f"v_add_u32 v{vXD[0]}, v{vXD[0]}, v7")
e("s_and_b32 s13, s12, 1"); e("s_lshl_b32 s13, s13, 6"); e(f"v_xor_b32 v{vXD[0]}, s13, v{vXD[0]}"); e(f"v_xor_b32 v{vXD[1]}, 64, v{vXD[0]}")
e(f"s_mul_i32 s{sXb}, s{sB}, 122880"); e("s_mul_i32 s13, s12, 30720"); e(f"s_add_u32 s{sXb}, s{sXb}, s13")
e("s_mul_i32 s15, s12, 3072")
e("v_lshlrev_b32 v7, 2, v6"); e(f"v_and_b32 v{vWq}, 15, v0"); e(f"v_xor_b32 v7, v7, v{vWq}"); e("v_lshlrev_b32 v7, 4, v7"); e(f"v_lshl_add_u32 v{vWq}, v6, 13, v7")
e(f"s_lshl_b32 s{sWb}, s{sH}, 8"); e("s_lshl_b32 s13, s12, 16"); e(f"s_add_u32 s{sWb}, s{sWb}, s13")
e("s_lshl_b32 s14, s12, 11")
vm = VM()
def w_issue(t):
    sl = GA + ((t + 2) % 5) * 16384
    o = []
    for hd in range(2):
        o += [f"s_add_u32 m0, s14, {sl + 8192*hd}", f"s_add_u32 s{sT0}, s{sWb}, {t*262144 + 1024*hd}", f"s_add_u32 s{sT1}, s{sWb}, {t*262144 + 1024*hd + 32768 - 1024}",
              f"buffer_load_dwordx4 v{vWq}, {srd(rW)}, s{sT0} offen lds", f"buffer_load_dwordx4 v{vWq}, {srd(rW)}, s{sT1} offen offset:1024 lds"]
    vm.issue(("w", t), 4)
    return o
def x_issue(j):
    o = [f"s_add_u32 m0, s15, {XS[j % 3]}"]
    for i in range(3):
        o += [f"s_add_u32 s{sT0}, s{sXb}, {j*128 + i*(10240 - 1024)}", f"buffer_load_dwordx4 v{vXD[i&1]}, {srd(rX)}, s{sT0} offen offset:{1024*i} lds"]
    vm.issue(("x", j), 3)
    return o
def q_need(t):
    tags = [x for x in (("w", t), ("x", t // 2)) if vm.has(x)]
    if not tags: return []
    last = max(tags, key=lambda tg: max(i for i, x in enumerate(vm.q) if x == tg))
    return [vm.wait(last)]
def q_pro(): return x_issue(0) + w_issue(0) + w_issue(1) + x_issue(1) + w_issue(2) + w_issue(3)
def q_iss(t):
    o = []
    if t % 2 == 0 and t // 2 + 2 < 10: o += x_issue(t // 2 + 2)
    if t + 4 < NQ: o += w_issue(t + 4)
    return o
cq = qset + q_pro() + pro + q_need(0)
for t in range(NQ):
    cq += ["s_barrier"] + q_iss(t) + (q_need(t + 1) if t + 1 < NQ else [])
emit(cq)
emit(stamp(1))
A.label("L_head")
a0 = at_step0(); a1 = at_step1([])
emit(a0); emit(a1)
I(f"s_cmp_eq_u32 s{sPass}, 0"); I("s_cbranch_scc1 L_noflag")
emit(n_get + flag_store())
A.label("L_noflag")
I(f"s_mov_b32 s{sCnt}, 8"); I("s_branch L_a2")
A.label("L_aloop")
st4 = [at_step(4), at_step(5), at_step(6)]
st4.append(at_step(7, extra=[f"s_sub_u32 s{sCnt}, s{sCnt}, 1"]))
emit(st4[0]); emit(st4[1]); A.label("L_a2"); emit(st4[2]); emit(st4[3])
I(f"s_cmp_lg_u32 s{sCnt}, 0"); I("s_cbranch_scc1 L_aloop")
a32 = at_step(32, qk=False)
a33 = at_last()
emit(a32); emit(a33)
if ST:
    I(f"s_cmp_lg_u32 s{sPass}, 0"); I("s_cbranch_scc1 L_stx"); emit(stamp(2)); A.label("L_stx")
I(f"s_add_u32 s{sHc}, s{sHc}, 4")
I(f"s_add_u32 s{sPass}, s{sPass}, 1"); I(f"s_cmp_lt_u32 s{sPass}, 2"); I("s_cbranch_scc1 L_head")
import re as _re
def ren67(l): return [_re.sub(r"\bv7\b", "v251", _re.sub(r"\bv6\b", "v250", x)) for x in l]
SAMP = f"buffer_load_dword v6, v{vPOLL}, {srd(rWS)}, 0 offen sc1"
CHK = f"v_cmp_ne_u32 vcc, s{sNonce}, v6"
EC = env("EC", 0); EG = env("EG", 0); NE = env("NE", 5)
if EC:
    ct = [f"s_cmp_ge_u32 s{sI}, 30", "s_cbranch_scc1 L_cfin"] + ren67(tail_bases() + [SAMP]) + ren67(tail_addr_setup())[:0] + zero_acc()
    ct += [x.replace("v6", "v251").replace("v7", "v253") for x in tail_addr_setup()]
    ct += flag_store() + stamp(3) + ren67([CHK]) + ["s_cbranch_vccz L_early", "s_branch L_late"]
else:
    ct = [f"s_cmp_ge_u32 s{sI}, 30", "s_cbranch_scc1 L_cfin"] + ren67(tail_addr_setup() + tail_bases()) + zero_acc() + ["s_barrier"] + tail_pre_reads()
    ct += flag_store() + stamp(3) + tail_refill() + ["s_branch L_tail"]
emit(ct)
A.label("L_cfin"); emit(flag_store()); emit(stamp(3)); I("s_endpgm")
for blk in ool: emit(blk)
errs = check_hazards(pro + a0 + a1 + st4[2] + st4[3] + st4[0] + st4[1] + st4[2] + st4[3] + a32 + a33 + a0 + a1 + flag_store() + st4[2], "C")
errs += check_hazards(a32 + a33 + ct, "Ct")
def with_ool(step):
    t = []
    for x in step:
        t.append(x)
        if x.startswith("s_cbranch") and "L_rare" in x:
            lab = x.split()[1] + ":"
            t += [b for b in ool if b[0] == lab][0]
    return t
errs += check_hazards(a1 + with_ool(st4[2]) + with_ool(st4[3]) + with_ool(st4[0]) + with_ool(st4[1]) + with_ool(st4[2]) + with_ool(st4[3]) + with_ool(a32) + a33, "Crare")

QACC = 8; XF = [104, 128]; WF = [152, 168]; QB = 184
XRL = 208; XRH = 212; WR = [216, 217]
g = []
e = g.append
e("L_g:")
e("s_setprio %d" % env("PRIOG", 0))
e(f"s_sub_u32 s12, s{sWave}, 4")
e("s_lshl_b32 s14, s12, 11")
gpro2 = []
e = gpro2.append
e("v_and_b32 v6, 31, v0"); e("v_lshrrev_b32 v7, 5, v0"); e("v_lshrrev_b32 v8, 1, v6"); e("v_and_b32 v8, 7, v8"); e("v_xor_b32 v8, v8, v7"); e("v_lshlrev_b32 v8, 4, v8")
e(f"v_lshl_add_u32 v{XRL}, v6, 7, v8")
for c_ in range(1, 4): e(f"v_xor_b32 v{XRL+c_}, {32*c_}, v{XRL}")
for c_ in range(4): e(f"v_add_u32 v{XRH+c_}, {XS[0]}, v{XRL+c_}")
e("v_lshrrev_b32 v6, 2, v0"); e("v_and_b32 v6, 3, v6")
e("v_lshrrev_b32 v8, 4, v0"); e("v_and_b32 v8, 1, v8"); e("v_lshlrev_b32 v8, 5, v8")
e("v_and_b32 v5, 1, v0"); e("v_lshl_add_u32 v8, v5, 4, v8"); e("v_and_b32 v5, 2, v0"); e("v_lshl_add_u32 v8, v5, 2, v8")
e("v_lshl_add_u32 v8, v6, 8, v8"); e("v_lshl_add_u32 v8, v6, 6, v8"); e("v_lshl_add_u32 v8, v7, 11, v8")
e("s_lshl_b32 s13, s12, 6"); e("v_xor_b32 v8, s13, v8")
e(f"v_add_u32 v{WR[0]}, {GA}, v8"); e(f"v_add_u32 v{WR[1]}, 49152, v{WR[0]}")
e(f"s_mov_b32 s{sPass}, 0")
def q_reads(t):
    sl = (t + 2) % 5; hi = sl // 3; so = (sl % 3) * 16384; par = t & 1
    xs = (t // 2) % 3
    o = []
    for s_ in range(2):
        o += [f"ds_read_b64_tr_b16 {v(WF[par]+s_*4+2*ee,2)}, v{WR[hi]} offset:{so+4096*s_+1024*ee}" for ee in range(2)]
        o += [f"ds_read_b128 {v(XF[par]+(s_*3+qb)*4,4)}, v{(XRH if xs == 0 else XRL)+2*par+s_} offset:{(0 if xs == 0 else XS[xs])+4096*qb}" for qb in range(3)]
    for s_ in range(2):
        o += [f"ds_read_b64_tr_b16 {v(WF[par]+8+s_*4+2*ee,2)}, v{WR[hi]} offset:{so+8192+4096*s_+1024*ee}" for ee in range(2)]
    return o
def q_mfmas(t):
    par = t & 1
    return [mf(QACC+48*hd+16*qb, WF[par]+8*hd+s_*4, XF[par]+(s_*3+qb)*4, "0" if (t == 0 and s_ == 0) else None) for hd in range(2) for s_ in range(2) for qb in range(3)]
def q_out(hd):
    o = []
    for qb in range(3):
        for hf in range(2):
            src = QACC + 48 * hd + 16 * qb + 8 * hf
            o += [f"v_mul_f32 v{src+t}, s{sT0}, v{src+t}" for t in range(8)]
            dst = QB + (qb * 2 + hf) * 4
            o += [f"v_cvt_pk_bf16_f32 v{dst+t}, v{src+2*t}, v{src+2*t+1}" for t in range(4)]
            o.append(f"ds_write_b128 v{6 if qb < 2 else 7}, {v(dst,4)} offset:{qb*8192 + hf*1024}")
    return o
CASS = -1
CAS = ["s_mov_b64 exec, 1", f"buffer_store_dword v230, off, {srd(rDBG)}, 0 sc1", "s_mov_b64 exec, -1"]
qb_ = []
QST = {0: 1, 5: 2, 10: 3, 15: 7}
for t in range(NQ):
    qb_.append("s_barrier")
    if t in QST: qb_ += stampq(QST[t])
    if t == CASS: qb_ += ["s_cmp_lg_u32 s15, 3", "s_cbranch_scc1 L_nocas2"] + CAS + ["L_nocas2:"]
    rd = q_reads(t)
    if t == 0:
        qb_ += rd
    else:
        gaps = {-1: rd[:2]}
        spread(rd[2:], 0, 5, gaps)
        qb_ += interleave(q_mfmas(t - 1), gaps)
    qb_.append("s_waitcnt lgkmcnt(0)")
gaps = {5: [f"s_mov_b32 s{sT0}, {fbits(CSC)}", f"s_add_u32 s{sT1}, s14, {GA}", f"v_add_u32 v6, s{sT1}, v1", f"v_add_u32 v7, s{sReg}, v1"], 6: ["s_nop 5"]}
spread(q_out(0), 7, 11, gaps)
qb_ += interleave(q_mfmas(NQ - 1), gaps)
qb_ += ["s_waitcnt vmcnt(0) lgkmcnt(0)", "s_barrier", "s_barrier"] + q_out(1) + ["s_waitcnt lgkmcnt(0)"]
if flag("qnl"): qb_ = [x for x in qb_ if not (x.startswith("buffer_load") and x.endswith("lds"))]
if flag("qnr"): qb_ = [x for x in qb_ if not x.startswith("ds_read")]
if flag("qnm"): qb_ = [x for x in qb_ if not x.startswith("v_mfma")]
emit(g)
PFG = env("PFG", 64)
I("s_mov_b32 s15, s12"); I(f"s_cmp_lg_u32 s15, 3"); I("s_cbranch_scc1 L_nocas")
I("s_cmp_lg_u32 s2, 0"); I("s_cbranch_scc1 L_pfd")
I("s_memrealtime s[16:17]"); I("s_waitcnt lgkmcnt(0)"); I("s_or_b32 s16, s16, 1"); I("v_mov_b32 v230, s16")
if CASS < 0: emit(CAS)
I("s_branch L_pfd")
A.label("L_nocas")
if PFG and not env('PFO', 0):
    sh = {16: 4, 64: 6, 128: 7}[PFG]
    ld = "buffer_load_dwordx4 {}" if PFG == 16 else "buffer_load_dword {}"
    dst = (lambda j: v(220 + 4 * j, 4)) if PFG == 16 else (lambda j: v(220 + j))
    I(f"s_cmp_eq_u32 s15, 1"); I("s_cbranch_scc1 L_pfx")

    lpr = 256 // PFG
    rpi = 64 // lpr
    I(f"s_mul_i32 s16, s{sB}, {80*8192}"); I(f"s_lshl_b32 s17, s{sH}, 8"); I("s_add_u32 s16, s16, s17"); I(f"s_lshl_b32 s17, s15, 9"); I("s_add_u32 s16, s16, s17")
    I(f"v_lshrrev_b32 v2, {int(math.log2(lpr))}, v0"); I("v_lshlrev_b32 v2, 13, v2"); I(f"v_and_b32 v3, {lpr-1}, v0"); I(f"v_lshl_add_u32 v2, v3, {sh}, v2")
    for j in range((80 + rpi - 1) // rpi):
        I(ld.format(f"{dst(j)}, v2, {srd(rW)}, s16 offen")); I(f"s_add_u32 s16, s16, {rpi*8192}")
    I("s_branch L_pfd")
    A.label("L_pfx")
    I(f"s_mul_i32 s16, s{sB}, 122880"); I(f"s_and_b32 s17, s{sI}, 3"); I("s_mul_i32 s17, s17, 30720"); I("s_add_u32 s16, s16, s17")
    I(f"v_lshlrev_b32 v2, {sh}, v0")
    for j in range((30720 + 64 * PFG - 1) // (64 * PFG)):
        I(ld.format(f"{dst(j)}, v2, {srd(rX)}, s16 offen")); I(f"s_add_u32 s16, s16, {64*PFG}")
    A.label("L_pfd")
emit(gpro2)
emit(qb_)
G0 = 2
A.label("L_go")
I(f"s_cmp_ge_u32 s{sI}, 30"); I("s_cbranch_scc1 L_end")
emit(tail_addr_setup())
go = [f"s_mul_i32 s{sWb}, s12, {1024*1280}", f"s_add_u32 s{sWb}, s{sWb}, s{sWOb}", f"s_lshl_b32 s{sXb}, s12, 16", f"s_add_u32 s{sXb}, s{sXb}, s{sOI}",
      f"s_lshl_b32 s{sHc}, s12, 3"] + poll_addr(3, sHc)
go += tail_h0(sOb) + [f"s_mul_i32 s{sOb}, s{sOb}, {128*1280}", f"s_add_u32 s{sOb}, s{sOb}, s{sWOb}"]
PS = env("PS", 6); LA = env("LA", 4); PL = env("PL", 2); R2 = env("R2", 28); OBG = 184; NSET = 7
R2L = eval(os.environ.get("R2L", "[]"))
vm = VM()
seq = [("W", c) for c in range(16)] + [("T", c) for c in (0, 1, 2, 3, 5, 6, 7)]
def wo_issue(ch, slot):
    vm.issue(ch, 4)
    return wo_dma(sWb if ch[0] == "W" else sOb, 32 * ch[1], ('s', slot * 4096))
w_iss = {}; w_rd = {}; o_iss = {}; mm_done = {}; fl_iss = {}; fl_ok = set()
nw = 0; nr = 0; no = 0; nm = 0; t4 = False
log = []
WSP = env('WSP', 2)
for S_ in range(G0, 2 * NA):
    go.append("s_barrier")
    a2 = S_ - NA
    body = []; lg = []
    if S_ == NA - 3: go += n_rd
    if S_ == NA - 2: go += n_get
    do_m = nm < 16 and nm in o_iss and o_iss[nm] <= S_ - LA and nm in w_rd
    do_r = nr < 19 and nr in w_iss and w_iss[nr] <= S_ - LA and (nr < NSET or (nr - NSET) in mm_done or (do_m and nm == nr - NSET))
    if do_m and vm.has(("o", nm)): go.append(vm.wait(("o", nm)))
    if do_r and vm.has(seq[nr]): go.append(vm.wait(seq[nr]))
    rd = f_reads(nr % 4, (nr + 5) % NSET) if do_r else []
    early = do_r and not (do_m and nm == nr - NSET)
    if do_m:
        gaps = {}
        if early: spread(rd, -1, 2, gaps)
        go += interleave(o_mfmas((nm + 5) % NSET, nm % 4, first=(nm == 0), OB=OBG), gaps)
        if not early: go += rd
        mm_done[nm] = S_; lg.append(f"M{nm}"); nm += 1
    else:
        go += rd
    if do_r: w_rd[nr] = S_; lg.append(f"r{nr}"); nr += 1
    go.append("s_waitcnt lgkmcnt(0)")
    rate = 2 if (a2 >= R2 or S_ in R2L) else 1
    for _ in range(rate):
        can_w = nw < len(seq) and (nw < 4 or (nw - 4) in w_rd) and (a2 >= 0 or S_ % WSP == WSP - 1)
        can_o = no < 16 and a2 >= PS and (no < 4 or (no - 4) in mm_done) and (no // 4 in fl_ok or (no // 4 in fl_iss and fl_iss[no // 4] <= S_ - PL))
        if can_w and (not can_o or (nw < 16 and nw <= no + 2)):
            go += wo_issue(seq[nw], nw % 4); w_iss[nw] = S_; lg.append("w%s%d" % seq[nw]); nw += 1
        elif can_o:
            hd = no // 4
            if hd not in fl_ok:
                if vm.has(("f", hd)): go.append(vm.wait(("f", hd)))
                polln[0] += 1; n_ = polln[0]
                go += [f"s_mov_b32 s{sSpin}, 200000", f"L_poll{n_}:", f"v_cmp_ne_u32 vcc, s{sNonce}, v6", f"s_sub_u32 s{sSpin}, s{sSpin}, 1", f"s_cbranch_scc1 L_pd{n_}",
                       f"s_and_b32 s{sT0}, vcc_lo, {3 << (2 * hd)}", f"s_cbranch_scc0 L_pd{n_}",
                       f"buffer_load_dword v6, v{vPOLL}, {srd(rWS)}, 0 offen sc1", "s_waitcnt vmcnt(0)", f"s_branch L_poll{n_}", f"L_pd{n_}:"]
                fl_ok.add(hd); lg.append(f"P{hd}")
            go += o_loads(sXb, no, no % 4, OB=OBG); vm.issue(("o", no), 4); o_iss[no] = S_; lg.append(f"o{no}"); no += 1
        elif not t4 and a2 >= 1:
            go += wo_issue(("T", 4), 4); t4 = True; lg.append("wT4")
    hd = len(fl_iss)
    if hd < 4 and a2 >= PS - PL and len(fl_ok) == hd and no >= 4 * hd - PL:
        go.append(f"buffer_load_dword v6, v{vPOLL}, {srd(rWS)}, 0 offen sc1"); vm.issue(("f", hd)); fl_iss[hd] = S_; lg.append(f"f{hd}")
    if EG and S_ == 2 * NA - 2:
        assert nm == 16 and no == 16 and nw >= 16 and len(fl_ok) == 4
        go += tail_bases() + [SAMP]; vm.issue("samp"); lg.append("samp")
    assert len(vm.q) <= 63
    log.append(f"{S_}:" + ",".join(lg))
if flag("log"): print(" ".join(log))
assert nm == 16 and nr == 19 and nw == len(seq) and t4, (nm, nr, nw, t4)
if EG:
    go += ([vm.wait("samp")] if vm.has("samp") else []) + [CHK, "s_cbranch_vccz L_gearly"]
    for _ in range(env("GSP", 1)): go += [SAMP, "s_waitcnt vmcnt(0)", CHK, "s_cbranch_vccz L_gearly"]
else:
    go += tail_bases()
DUM = f"buffer_load_dword v7, v255, {srd(rDBG)}, 0 offen"
if flag("nowo") or flag("noo"): go = ["v_mov_b32 v255, 0x1000"] + go
if flag("nowo"): go = [DUM if (x.startswith("buffer_load") and srd(rWO) in x) else x for x in go]
if flag("noo"): go = [DUM if (x.startswith("buffer_load_dwordx4") and srd(rWS) in x) else x for x in go]
if flag("onosc"): go = [x.replace(" sc1", "") if x.startswith("buffer_load_dwordx4") else x for x in go]
if flag("ofake"): go = [x.replace(srd(rWS), srd(rK)) if x.startswith("buffer_load_dwordx4") else x for x in go]
if flag("wofake"): go = [x.replace(f"dwordx4 v{vWD},", "dwordx4 v1,") for x in go]
if flag("nord"): go = [x for x in go if not x.startswith("ds_read")]
if flag("nomm"): go = [x for x in go if not x.startswith("v_mfma")]
go += ["s_barrier", "s_branch L_tail"]
if EG:
    go += ["L_gearly:"]
    for c in range(8): go += o_loads(sXb, c, c)
    go += ["s_barrier"] + stamp(4) + ["s_branch L_tail2"]
emit(go)
errs += check_hazards(g + gpro2 + qb_, "G") + check_hazards(cq, "CQ")
errs += check_hazards(tail_addr_setup() + go, "Go")

A.label("L_ld")
I("s_setprio 3")
vm = VM()
emit(qset); emit(q_pro())
for p in range(2):
    I(f"s_lshl_b32 s{sKV+p}, s{sB}, 5"); I(f"s_add_u32 s{sKV+p}, s{sKV+p}, s{sH}")
    if p: I(f"s_add_u32 s{sKV+p}, s{sKV+p}, 4")
    I(f"s_lshl_b32 s{sKV+p}, s{sKV+p}, 18")
I("v_lshrrev_b32 v6, 4, v0")
I("v_and_b32 v7, 15, v0"); I("v_xor_b32 v7, v7, v6"); I("v_lshlrev_b32 v7, 4, v7"); I("v_lshl_add_u32 v248, v6, 8, v7")
for j in range(1, 4): I(f"v_xor_b32 v{248+j}, {64*j}, v248")
I("v_lshlrev_b32 v7, 2, v6"); I("v_and_b32 v5, 15, v0"); I("v_xor_b32 v7, v7, v5"); I("v_lshlrev_b32 v7, 4, v7"); I("v_lshl_add_u32 v252, v6, 8, v7")
I("v_mov_b32 v253, 0")
emit(tail_addr_setup())
if env("TW", 0):
    for r_ in (rK, rV): I(f"buffer_load_dword v247, v253, {srd(r_)}, s{sKV} offen"); vm.issue("tw")
def kv_issue(kind, it):
    p, t = divmod(it, 32)
    base = (KRING if kind == "K" else VRING) + (t % 4) * 8192
    o = []
    for half in range(2):
        o += [f"s_mov_b32 m0, {base + 4096*half}", f"s_add_u32 s{sT0}, s{sKV+p}, {t*8192 + 4096*half}"]
        for i in range(4):
            vo = 248 + i if kind == "K" else 252
            o.append(f"buffer_load_dwordx4 v{vo}, {srd(rK if kind=='K' else rV)}, s{sT0} offen offset:{1024*i} nt lds")
    vm.issue((kind, it), 8)
    if flag("noload"): return []
    return o
def use_step(kind, it):
    p, t = divmod(it, 32)
    return NQ + NA * p + t + (0 if kind == "K" else 1)
NS = NQ + 2 * NA
init = eval(os.environ.get("KVINIT", "[16,16,16,17,17,18,18,19]"))
order = [("K",0),("V",0),("K",1),("V",1),("K",2),("V",2),("K",3),("V",3)]
sched = {}
assert init[4] >= 16 and init[6] >= 16 and init[5] >= 18 and init[7] >= 18
for st_, it in zip(init, order): sched.setdefault(st_, []).append(it)
WD = env("WD", 4)
for it in range(4, 64):
    for kind in "KV": sched.setdefault(use_step(kind, it - WD) + 1 if it >= WD else 19, []).append((kind, it))
def free_step(addr):
    if addr < VRING: return use_step("K", 60 + addr // 8192) + 1
    if addr < GA: return use_step("V", 60 + (addr - VRING) // 8192) + 1
    return NQ + NA + 27
for r in range(4):
    for c in range(5):
        ad = r * REG + c * 4096
        sched.setdefault(free_step(ad), []).append(("W", r, c))
lastkv = max(s_ for s_, l in sched.items() if any(x[0] != "W" for x in l))
CAP = env("CAP", 63)
def do_issue(st_):
    for it in sched.get(st_, []):
        n = 4 if it[0] == "W" else 8
        if len(vm.q) + n > CAP:
            I(f"s_waitcnt vmcnt({CAP - n})"); vm.q = vm.q[len(vm.q) - (CAP - n):]
        if it[0] == "W":
            _, r, c = it
            emit(wo_dma(sWOb, k0_of(r) + 32 * c, ('c', r * REG + c * 4096))); vm.issue(it, 4)
        else:
            emit(kv_issue(*it))
        assert len(vm.q) <= 63, (st_, len(vm.q))
do_issue(-1)
emit(q_need(0))
for st_ in range(NS):
    I("s_barrier")
    if st_ == NQ + NA + 27:
        pass
    if st_ < NQ: emit(q_iss(st_))
    if EC and st_ == NS - 1: I(SAMP); vm.issue("samp")
    do_issue(st_)
    if st_ == NQ + 6: emit(["s_mov_b64 exec, 1"] + n_iss(7) + ["s_mov_b64 exec, -1"]); vm.issue("n")
    if st_ == NQ + 12:
        emit(([vm.wait("n")] if vm.has("n") else []) + n_fin(7) + [f"v_mov_b32 v6, {NLDS}", f"v_mov_b32 v7, s{sNonce}", "ds_write_b32 v6, v7", "s_waitcnt lgkmcnt(0)"])
    if st_ == NS - 8: emit(tail_bases() + zero_acc())
    if st_ + 1 < NQ: emit(q_need(st_ + 1))
    need = [(k, it) for k in "KV" for it in range(64) if use_step(k, it) == st_ + 1 and vm.has((k, it))]
    if need:
        last = max(need, key=lambda t: max(i for i, x in enumerate(vm.q) if x == t))
        I(vm.wait(last))
I(f"s_cmp_ge_u32 s{sI}, 30"); I("s_cbranch_scc1 L_end")
def tail_main(vm):
    o = []
    for c in range(8):
        if vm.has(c): o.append(vm.wait(c))
        if c >= 3: o.append(f"s_waitcnt lgkmcnt({8 if c < 7 else 0})")
        o += o_mfmas(c % 3, c)
        if c + 3 >= 5 and vm.has("rf"): o.append(vm.wait("rf"))
        if c + 3 < 8: o += f_reads((c + 3) % 5, c % 3)
    return o
if EC:
    lt = ["s_waitcnt vmcnt(0)", CHK, "s_cbranch_vccnz L_late", "L_early:"]
    vm = VM()
    for c in range(NE): lt += o_loads(sXb, c, c); vm.issue(c, 4)
    lt += ["s_barrier"] + stamp(4) + tail_pre_reads() + tail_refill(); vm.issue("rf", 12)
    for c in range(NE, 8): lt += o_loads(sXb, c, c); vm.issue(c, 4)
    lt += tail_main(vm) + ["s_branch L_red"]
    errs += check_hazards(lt, "E")
    emit(lt)
    lt = ["L_late:", "s_barrier"] + tail_pre_reads() + tail_refill()
else:
    lt = ["s_waitcnt vmcnt(0)", "s_barrier"] + tail_pre_reads() + tail_refill()
emit(lt)

tl = ["L_tail:"] + poll() + stamp(4)
vm = VM()
for c in range(8): tl += o_loads(sXb, c, c); vm.issue(c, 4)
tl += ["L_tail2:"] + tail_main(vm) + ["L_red:"]
tl += stamp(5)
tl += [f"v_add_u32 v6, s{sReg}, v1", "s_nop 7", "s_nop 2"]
for q in range(16): tl.append(f"ds_write_b128 v6, {v(ACC+4*q,4)} offset:{q*1024}")
tl += [f"s_lshl_b32 s{sT0}, s{sWave}, 11", f"v_add_u32 v2, s{sT0}, v1", f"v_add_u32 v3, {3*REG}, v2", f"v_add_u32 v4, {6*REG}, v2"]
tl += [f"s_lshl_b32 s{sT0}, s{sMt}, 1", f"s_lshr_b32 s{sT1}, s{sWave}, 2", f"s_add_u32 s{sT0}, s{sT0}, s{sT1}", f"s_mul_i32 s{sT0}, s{sT0}, 81920",
       f"s_mul_i32 s{sT1}, s{sBr}, 1280", f"s_add_u32 s{sT0}, s{sT0}, s{sT1}", f"s_add_u32 s{sT0}, s{sT0}, s{sWOb}",
       f"s_and_b32 s{sT1}, s{sWave}, 3", f"s_lshl_b32 s{sT1}, s{sT1}, 5", f"s_add_u32 s{sT0}, s{sT0}, s{sT1}",
       "v_and_b32 v6, 31, v0", "v_mul_u32_u24 v6, 2560, v6", "v_lshrrev_b32 v7, 5, v0", "v_lshl_add_u32 v5, v7, 4, v6"]
tl += ["s_waitcnt lgkmcnt(0)", "s_barrier"]
for r in range(8):
    for j in range(2):
        if r == 7 and j == 1: tl.append("s_waitcnt lgkmcnt(14)")
        tl.append(f"ds_read_b128 {v(OB+8*r+4*j,4)}, v{2 + r//3} offset:{(r%3)*REG + j*1024}")
for r in range(1, 8):
    tl.append(f"s_waitcnt lgkmcnt({14 - 2*r})")
    tl += [f"v_add_f32 v{OB+i}, v{OB+i}, v{OB+8*r+i}" for i in range(8)]
tl += [f"v_cvt_pk_bf16_f32 v{ACC+i}, v{OB+2*i}, v{OB+2*i+1}" for i in range(4)]
tl += [f"buffer_store_dwordx4 {v(ACC,4)}, v5, {srd(rOUT)}, s{sT0} offen"]
tl += stamp(6)
tl += ["L_end:", "s_endpgm"]
emit(tl)
errs += check_hazards(lt + tl, "T")
for x in errs: print(x)
assert not errs

A.raw('.section .rodata,"a"')
A.raw(".p2align 6")
A.raw(f".amdhsa_kernel {NAME}")
for l in ("next_free_vgpr 256", "next_free_sgpr 96", "accum_offset 256", "group_segment_fixed_size 0", "kernarg_size 104",
          "user_sgpr_count 2", "user_sgpr_kernarg_segment_ptr 1", "system_sgpr_workgroup_id_x 1"):
    A.raw("  .amdhsa_" + l)
A.raw(".end_amdhsa_kernel")
open(out_path, "w").write(A.text())
```

```python
import sys, math, struct, os
from asmlib import *

ARGS = sys.argv[1:]
def flag(x): return ("--" + x) in ARGS
def env(x, d): return int(os.environ.get(x, str(d)))
out_path = [x for x in ARGS if not x.startswith("--")][0]
NAME = "concat_heads__gqa_block_cached__mha_block_cached__near_ridge_kernel"
ST = flag("stamp")

def fbits(x): return "0x%08x" % struct.unpack("<I", struct.pack("<f", x))[0]
CSC = (128 ** -0.5) * math.log2(math.e)
LTHR = float(2 ** env("LTHR", 20))

A = Asm()
hdr = open("concat_heads__gqa_block_cached__mha_block_cached__near_ridge.s.ref").read().split("\n")
for l in hdr:
    if l.startswith("; @launch"): A.raw("; @launch grid=(256,1,1) block=(512,1,1) lds=163840")
    elif l.startswith(";"): A.raw(l)
    else: break
A.raw('.amdgcn_target "amdgcn-amd-amdhsa--gfx950"')
A.raw(".text")
A.raw(f".globl {NAME}"); A.raw(".p2align 8"); A.raw(f".type {NAME},@function"); A.label(NAME)
I = A.i
def emit(lst):
    for x in lst:
        if x.endswith(":"): A.raw(x)
        else: I(x)

KRING = 0; VRING = 32768; GA = 65536; HAND = GA + 2 * 16384; REG = 20480
FLAGB = 12582912; WSN = FLAGB + 1536 * 128 + (65536 if ST else 0); STB = FLAGB + 1536 * 128
NQ = 20; NA = 34
sWave = 4; sBr = 5; sB = 6; sH = 7; sMt = 8; sNt = 9; sI = 10; sReg = 11
rX = 44; rW = 48; rK = 52; rV = 56; rWO = 60; rWS = 64; rOUT = 68; rDBG = 72
sNonce = 76; sT0 = 77; sT1 = 78; sCnt = 79; sPass = 80; sThr = 81; sKV = 82; sXb = 84; sWb = 85; sOb = 86; sOb2 = 87
sWOb = 88; sOI = 89; sSpin = 90; sHc = 91
def srd(r): return f"s[{r}:{r+3}]"

I("s_cmp_ge_u32 s2, 256"); I("s_cbranch_scc1 L_end")
I("s_load_dwordx16 s[16:31], s[0:1], 0")
I("s_load_dwordx8 s[32:39], s[0:1], 64")
I("s_load_dwordx2 s[40:41], s[0:1], 96")
if ST: I("s_memrealtime s[92:93]")
I("v_lshrrev_b32 v1, 6, v0")
I("v_and_b32 v0, 63, v0")
I("s_and_b32 s3, s2, 7")
I(f"v_readfirstlane_b32 s{sWave}, v1")
I(f"s_lshr_b32 s{sI}, s2, 3")
I(f"s_and_b32 s{sBr}, s3, 1")
I("s_lshr_b32 s3, s3, 1")
I(f"s_lshr_b32 s{sB}, s{sI}, 2")
I(f"s_add_u32 s{sH}, s{sI}, {env('HROT', 0)}"); I(f"s_and_b32 s{sH}, s{sH}, 3"); I(f"s_lshl_b32 s12, s3, 3"); I(f"s_add_u32 s{sH}, s{sH}, s12")
if env("MAP", 1) == 0:
    I(f"s_mul_i32 s12, s{sI}, 26"); I("s_lshr_b32 s12, s12, 8")
    I(f"s_mul_i32 s13, s12, 10"); I(f"s_sub_u32 s{sNt}, s{sI}, s13")
    I(f"s_mul_i32 s{sMt}, s3, 3"); I(f"s_add_u32 s{sMt}, s{sMt}, s12")
else:
    I(f"s_mul_i32 s12, s{sI}, 52"); I("s_lshr_b32 s12, s12, 8")
    I(f"s_mul_i32 s13, s12, 5"); I(f"s_sub_u32 s{sNt}, s{sI}, s13")
    I("s_and_b32 s13, s3, 1"); I("s_mul_i32 s13, s13, 5"); I(f"s_add_u32 s{sNt}, s{sNt}, s13")
    I("s_lshr_b32 s13, s3, 1"); I(f"s_mul_i32 s{sMt}, s13, 6"); I(f"s_add_u32 s{sMt}, s{sMt}, s12")
I(f"s_mul_i32 s{sReg}, s{sWave}, {REG}")
I("v_lshlrev_b32 v1, 4, v0")
for r, n in ((rX, 983040), (rW, 5242880), (rK, 67108864), (rV, 67108864), (rWO, 5242880), (rWS, WSN), (rOUT, 1966080), (rDBG, 256)):
    I(f"s_mov_b32 s{r+2}, {n}"); I(f"s_mov_b32 s{r+3}, 0x20000")
I(f"s_mul_i32 s{sOI}, s{sBr}, 12"); I(f"s_add_u32 s{sOI}, s{sOI}, s{sMt}"); I(f"s_lshl_b32 s{sOI}, s{sOI}, 19")
I(f"s_lshl_b32 s{sWOb}, s{sNt}, 7")
I("s_waitcnt lgkmcnt(0)")
I(f"s_cmp_eq_u32 s{sBr}, 0")
for r, a_, b_ in ((rX, 16, 26), (rK, 18, 28), (rV, 20, 30), (rW, 22, 32), (rWO, 24, 34)):
    I(f"s_cselect_b32 s{r}, s{a_}, s{b_}"); I(f"s_cselect_b32 s{r+1}, s{a_+1}, s{b_+1}")
for r, a_ in ((rOUT, 36), (rDBG, 38), (rWS, 40)):
    I(f"s_mov_b32 s{r}, s{a_}"); I(f"s_mov_b32 s{r+1}, s{a_+1}")
if ST:
    I(f"s_lshl_b32 s93, s2, 3"); I(f"s_add_u32 s93, s93, s{sWave}"); I("s_lshl_b32 s93, s93, 5"); I(f"s_add_u32 s93, s93, {STB}")
    if not env("STM", 0): I("v_mov_b32 v254, s92"); I("v_mov_b32 v255, 0"); I(f"buffer_store_dword v254, v255, {srd(rWS)}, s93 offen")
I(f"s_cmp_eq_u32 s{sWave}, 3"); I("s_cbranch_scc1 L_ld")
I(f"s_cmp_gt_u32 s{sWave}, 3"); I("s_cbranch_scc1 L_g")

def mf(d, a_, b_, c=None):
    cc = v(d, 16) if c is None else c
    return f"v_mfma_f32_32x32x16_bf16 {v(d,16)}, {v(a_,4)}, {v(b_,4)}, {cc}"
def spread(ops, g0, g1, gaps):
    n = g1 - g0 + 1
    for k in range(n):
        lo = len(ops) * k // n; hi = len(ops) * (k + 1) // n
        gaps.setdefault(g0 + k, []).extend(ops[lo:hi])
class VM:
    def __init__(self): self.q = []
    def issue(self, tag, n=1): self.q += [tag] * n
    def wait(self, tag):
        idx = max(i for i, t in enumerate(self.q) if t == tag)
        n = len(self.q) - 1 - idx
        assert n <= 63, n
        self.q = self.q[idx + 1:]
        return f"s_waitcnt vmcnt({n})"
    def has(self, tag): return tag in self.q
    def drain(self): self.q = []
stampn = [0]
def stampq(k, gq=False):
    o = stamp(k)
    if not o or (env("STM", 0) and gq): return []
    return [f"s_cmp_lg_u32 s{sPass}, {env('STP', 0)}", "s_cbranch_scc1 " + o[-1][:-1]] + o
def stamp(k):
    if not ST: return []
    stampn[0] += 1
    lab = f"L_st{stampn[0]}"
    return ["s_nop 0", f"s_cbranch_scc1 {lab}", "s_memrealtime s[94:95]", "s_waitcnt lgkmcnt(0)",
            "v_mov_b32 v254, s94", "v_mov_b32 v255, 0", f"buffer_store_dword v254, v255, {srd(rWS)}, s93 offen offset:{4*k}", f"{lab}:"][2:]

ACC = 8; FB = [72, 88, 104]; OB = 120
vWD = 2; vTR = [3, 4]; vPOLL = 5
def tail_addr_setup():
    o = []
    e = o.append
    e("v_lshrrev_b32 v6, 3, v0"); e("v_lshrrev_b32 v7, 2, v0"); e("v_and_b32 v7, 4, v7"); e(f"v_and_b32 v{vWD}, 7, v0"); e(f"v_xor_b32 v7, v7, v{vWD}")
    e(f"v_mul_u32_u24 v{vWD}, 1280, v6"); e(f"v_lshl_add_u32 v{vWD}, v7, 4, v{vWD}")
    e("v_lshrrev_b32 v6, 2, v0"); e("v_and_b32 v6, 3, v6")
    e("v_lshrrev_b32 v3, 4, v0"); e("v_and_b32 v3, 1, v3"); e("v_lshlrev_b32 v3, 5, v3")
    e("v_and_b32 v7, 1, v0"); e("v_lshl_add_u32 v3, v7, 4, v3"); e("v_and_b32 v7, 2, v0"); e("v_lshl_add_u32 v3, v7, 2, v3")
    e("v_lshl_add_u32 v3, v6, 7, v3"); e("v_lshrrev_b32 v6, 1, v6"); e("v_lshl_add_u32 v3, v6, 6, v3")
    e("v_lshrrev_b32 v7, 5, v0"); e("v_lshl_add_u32 v3, v7, 10, v3")
    e(f"v_add_u32 v3, s{sReg}, v3"); e("v_xor_b32 v4, 64, v3")
    return o
def wo_dma(sbase, krow, m0):
    o = [f"s_add_u32 m0, s{sReg}, {m0[1]}" if m0[0] == 's' else f"s_mov_b32 m0, {m0[1]}"]
    for i in range(4):
        o.append(f"s_add_u32 s{sT0}, s{sbase}, {(krow + 8*i)*1280 - 1024*i}")
        o.append(f"buffer_load_dwordx4 v{vWD}, {srd(rWO)}, s{sT0} offen offset:{1024*i} lds")
    return o
def o_loads(sbase, c, buf, OB=OB):
    o = []
    for mb in range(2):
        o.append(f"s_add_u32 s{sT0}, s{sbase}, {mb*262144 + c*2048}")
        for s_ in range(2):
            o.append(f"buffer_load_dwordx4 {v(OB+buf*16+(mb*2+s_)*4,4)}, v1, {srd(rWS)}, s{sT0} offen offset:{1024*s_}" + os.environ.get("OM", " sc1").replace("_", " "))
    return o
def f_reads(slot, fb):
    b = FB[0] + 16 * fb
    return [f"ds_read_b64_tr_b16 {v(b+(s_*2+w)*4+2*ee,2)}, v{vTR[w]} offset:{slot*4096+2048*s_+512*ee}" for s_ in range(2) for w in range(2) for ee in range(2)]
def o_mfmas(fb, buf, first=False, OB=OB):
    b = FB[0] + 16 * fb
    return [mf(ACC+16*(mb*2+w), b+(s_*2+w)*4, OB+buf*16+(mb*2+s_)*4, "0" if (first and s_ == 0) else None) for s_ in range(2) for mb in range(2) for w in range(2)]
polln = [0]
def poll():
    polln[0] += 1
    n = polln[0]
    return [f"s_mov_b32 s{sSpin}, 200000", f"L_poll{n}:",
            f"buffer_load_dword v6, v{vPOLL}, {srd(rWS)}, 0 offen sc1", f"s_sub_u32 s{sSpin}, s{sSpin}, 1", "s_waitcnt vmcnt(0)",
            f"v_cmp_ne_u32 vcc, s{sNonce}, v6", f"s_cbranch_vccz L_pd{n}", f"s_cmp_lg_u32 s{sSpin}, 0", f"s_cbranch_scc1 L_poll{n}", f"L_pd{n}:"]
def poll_addr(nh_mask, sHead0, rot=None):
    return [f"s_lshr_b32 s{sT0}, s{sOI}, 6", f"s_lshl_b32 s{sT1}, s{sHead0}, 7", f"s_add_u32 s{sT0}, s{sT0}, s{sT1}", f"s_add_u32 s{sT0}, s{sT0}, {FLAGB}",
            f"v_and_b32 v{vPOLL}, 1, v0", f"v_lshlrev_b32 v{vPOLL}, 12, v{vPOLL}", "v_lshrrev_b32 v6, 1, v0"] + ([f"v_add_u32 v6, s{rot}, v6"] if rot else []) + [f"v_and_b32 v6, {nh_mask}, v6",
            f"v_lshl_add_u32 v{vPOLL}, v6, 7, v{vPOLL}", f"v_add_u32 v{vPOLL}, s{sT0}, v{vPOLL}"]
def k0_of(w): return 1024 * (w >> 1) + 512 + 256 * (w & 1)
TR = env("TR", 3)
def tail_h0(dst, w=None):
    w = f"s{sWave}" if w is None else str(w)
    return [f"s_mul_i32 s{sT0}, s{sNt}, {TR}", f"s_add_u32 s{sT0}, s{sT0}, {w}", f"s_and_b32 s{sT0}, s{sT0}, 7",
            f"s_and_b32 s{dst}, s{sT0}, 6", f"s_add_u32 s{dst}, s{dst}, s{sT0}", f"s_lshl_b32 s{dst}, s{dst}, 1", f"s_add_u32 s{dst}, s{dst}, 4"]
def tail_bases():
    return tail_h0(sHc) + [f"s_mul_i32 s{sWb}, s{sHc}, {128*1280}", f"s_add_u32 s{sWb}, s{sWb}, s{sWOb}",
            f"s_lshl_b32 s{sXb}, s{sHc}, 13", f"s_add_u32 s{sXb}, s{sXb}, s{sOI}"] + poll_addr(1, sHc)
def tail_pre_reads():
    return f_reads(0, 0) + f_reads(1, 1)[:7] + ["s_waitcnt lgkmcnt(7)"] + f_reads(1, 1)[7:] + f_reads(2, 2)[:7] + ["s_waitcnt lgkmcnt(7)"] + f_reads(2, 2)[7:] + ["s_waitcnt lgkmcnt(0)"]
def tail_refill():
    return wo_dma(sWb, 160, ('s', 0)) + wo_dma(sWb, 192, ('s', 4096)) + wo_dma(sWb, 224, ('s', 8192))
def zero_acc(): return [f"v_mov_b32 v{ACC+i}, 0" for i in range(64)]

Q=8; O=40; S=[104,120]; P=[136,144]; KF=152; VF=184; NEGM=216; KST=232; VST=240; LS=[244,246]; TT=248
F=2; D=3; T0=4; T1=5
pro = []
e = pro.append
e("s_setprio %d" % env("PRIOC", 2))
e(f"s_mov_b32 s{sThr}, {fbits(LTHR)}"); e(f"s_mov_b32 s{sPass}, 0"); e(f"s_mov_b32 s{sHc}, s{sH}")
e("v_and_b32 v2, 31, v0"); e("v_lshrrev_b32 v3, 5, v0")
e("v_and_b32 v4, 15, v2"); e("v_xor_b32 v4, v4, v3"); e("v_lshlrev_b32 v4, 4, v4"); e("v_lshl_add_u32 v4, v2, 8, v4")
for s_ in range(8): e(f"v_xor_b32 v{KST+s_}, {32*s_}, v4")
e("v_lshrrev_b32 v2, 2, v0"); e("v_and_b32 v2, 3, v2")
e("v_lshrrev_b32 v4, 4, v0"); e("v_and_b32 v4, 1, v4"); e("v_lshlrev_b32 v4, 5, v4")
e("v_and_b32 v5, 1, v0"); e("v_lshl_add_u32 v4, v5, 4, v4"); e("v_and_b32 v5, 2, v0"); e("v_lshl_add_u32 v4, v5, 2, v4")
e("v_lshl_add_u32 v4, v2, 8, v4"); e("v_lshl_add_u32 v4, v2, 6, v4"); e("v_lshl_add_u32 v4, v3, 10, v4")
for w in range(4): e(f"v_xor_b32 v{VST+w}, {64*w}, v4")

PFD = env("PFD", 0); PFS = env("PFS", 64); PFA = env("PFA", 0); PFR = env("PFR", 1); PFM = os.environ.get("PFM", "")
rPF = rX; sIt = sKV; sPo = sKV + 1
if PFD:
    e(f"s_cmp_eq_u32 s{sWave}, 0")
    e(f"s_cselect_b32 s{rPF}, s{rK}, s{rV}"); e(f"s_cselect_b32 s{rPF+1}, s{rK+1}, s{rV+1}")
    e(f"s_cmp_lt_u32 s{sWave}, 2"); e(f"s_cselect_b32 s{rPF+2}, s{rK+2}, 0")
    e(f"s_lshl_b32 s{sPo}, s{sB}, 5"); e(f"s_add_u32 s{sPo}, s{sPo}, s{sH}"); e(f"s_lshl_b32 s{sPo}, s{sPo}, 18"); e(f"s_add_u32 s{sPo}, s{sPo}, {4*8192}")
    e(f"s_mov_b32 s{sSpin}, 8192"); e(f"s_mov_b32 s{sIt}, 4"); e(f"v_lshlrev_b32 v7, {int(math.log2(PFS))}, v0")
def pf_ops():
    if not PFD: return []
    o = [f"buffer_load_dword v6, v7, {srd(rPF)}, s{sPo} offen {PFM}"]
    if PFS == 64: o += [f"s_add_u32 s{sT1}, s{sPo}, 4096", f"buffer_load_dword v6, v7, {srd(rPF)}, s{sT1} offen {PFM}"]
    o += [f"s_add_u32 s{sIt}, s{sIt}, 1", f"s_cmp_eq_u32 s{sIt}, 32", f"s_cselect_b32 s{sT1}, {8192+15*262144}, s{sSpin}", f"s_add_u32 s{sPo}, s{sPo}, s{sT1}",
          f"s_cmp_ge_u32 s{sIt}, 64", f"s_cselect_b32 s{rPF+2}, 0, s{rPF+2}"]
    return o
def k_reads(slot): return [f"ds_read_b128 {v(KF+4*s_,4)}, v{KST+s_} offset:{KRING+8192*slot}" for s_ in range(8)]
def v_reads(slot, kb):
    return [f"ds_read_b64_tr_b16 {v(VF+(kb*4+w)*4+2*ee,2)}, v{VST+w} offset:{VRING+8192*slot+4096*kb+2048*ee}" for w in range(4) for ee in range(2)]
def qk_mfmas(par, c0): return [mf(S[par], KF+4*s_, Q+4*s_, c0 if s_ == 0 else None) for s_ in range(8)]
def pv_mfmas(par): return [mf(O+16*w, VF+(kb*4+w)*4, P[par]+4*kb) for kb in range(2) for w in range(4)]
def max_ops(sb):
    return [f"v_max3_f32 v{T0}, v{sb}, v{sb+1}, v{sb+2}", f"v_max3_f32 v{T1}, v{sb+3}, v{sb+4}, v{sb+5}",
            f"v_max3_f32 v{T0}, v{T0}, v{sb+6}, v{sb+7}", f"v_max3_f32 v{T1}, v{T1}, v{sb+8}, v{sb+9}",
            f"v_max3_f32 v{T0}, v{T0}, v{sb+10}, v{sb+11}", f"v_max3_f32 v{T1}, v{T1}, v{sb+12}, v{sb+13}",
            f"v_max3_f32 v{T0}, v{T0}, v{sb+14}, v{sb+15}", f"v_max_f32 v{T0}, v{T0}, v{T1}",
            f"v_mov_b32 v{T1}, v{T0}", "s_nop 1", f"v_permlane32_swap_b32 v{T0}, v{T1}", "s_nop 0", f"v_max_f32 v{D}, v{T0}, v{T1}"]
def sm_ops(sp, lold=None):
    sb = S[sp]; pb = P[sp]; ln = LS[sp]
    o = []
    for i in range(16 + 2):
        if i < 16: o.append(f"v_exp_f32 v{TT+(i&7)}, v{sb+i}")
        j = i - 2
        if 0 <= j < 16:
            if j < 2:
                o.append(f"v_mov_b32 v{ln+j}, v{TT+j}" if lold is None else f"v_add_f32 v{ln+j}, v{lold+j}, v{TT+j}")
            else:
                o.append(f"v_add_f32 v{ln+(j&1)}, v{ln+(j&1)}, v{TT+(j&7)}")
            if j & 1: o.append(f"v_cvt_pk_bf16_f32 v{pb+(j>>1)}, v{TT+((j-1)&7)}, v{TT+(j&7)}")
    return o
ool = []
site = [0]
def rare_block(n, par, qk):
    sp = 1 - par
    o = [f"L_rare{n}:"] + max_ops(S[sp]) + [f"v_max_f32 v{D}, 0, v{D}", f"v_exp_f32 v{F}, -v{D}"]
    o += [f"v_sub_f32 v{S[sp]+i}, v{S[sp]+i}, v{D}" for i in range(16)]
    o += [f"v_mul_f32 v{LS[par]+j}, v{LS[par]+j}, v{F}" for j in range(2)]
    o += sm_ops(sp, LS[par])
    if qk: o += [f"v_sub_f32 v{S[par]+i}, v{S[par]+i}, v{D}" for i in range(16)]
    o += [f"v_sub_f32 v{NEGM+i}, v{NEGM+i}, v{D}" for i in range(16)]
    o += [f"v_mul_f32 v{O+i}, v{O+i}, v{F}" for i in range(64)]
    o += [f"s_branch L_back{n}"]
    return o
def at_step(a, qk=True, extra=None):
    par = a & 1
    n = site[0]; site[0] += 1
    o = ["s_barrier"]
    mm = pv_mfmas(par) + (qk_mfmas(par, v(NEGM, 16)) if qk else [])
    kr = k_reads(a % 4) if qk else []
    vs = (a - 1) % 4
    gaps = {}
    if qk:
        gaps[-1] = kr[:2]
        spread(kr[2:], 0, 2, gaps)
        if env("PFSS", 1): spread(pf_ops(), 0, 1, gaps)
        sm = sm_ops(1 - par, LS[par])
        spread(sm, 2, 14, gaps)
        spread(v_reads(vs, 0), 4, 7, gaps)
        gaps[7].append("s_waitcnt lgkmcnt(8)")
        spread(v_reads(vs, 1), 8, 11, gaps)
    else:
        gaps[-1] = ["s_nop 5"]
        sm = sm_ops(1 - par, LS[par])
        spread(sm, 2, 7, gaps)
        spread(v_reads(vs, 0), 4, 6, gaps)
        gaps[7] = v_reads(vs, 1) + gaps[7]
    last = len(mm) - 1
    ln = LS[1 - par]
    chk = [f"v_max_f32 v{T0}, v{ln}, v{ln+1}", f"v_cmp_lt_f32 vcc, s{sThr}, v{T0}"]
    gaps.setdefault(last, []).extend(chk + (extra or []) + [f"s_cbranch_vccnz L_rare{n}", f"L_back{n}:"])
    ool.append(rare_block(n, par, qk))
    o += interleave(mm, gaps)
    o.append("s_waitcnt lgkmcnt(0)")
    return o
def at_step0():
    o = [f"s_lshl_b32 s{sT0}, s{sWave}, 13", f"s_add_u32 s{sT0}, s{sT0}, {GA}", f"s_mov_b32 s{sT1}, 2048", f"s_cmp_eq_u32 s{sWave}, 2",
         f"s_cselect_b32 s{sT0}, {4*REG+16384}, s{sT0}", f"s_cselect_b32 s{sT1}, {REG}, s{sT1}", f"v_add_u32 v{TT}, s{sT0}, v1"]
    o += [f"v_add_u32 v{TT+j+1}, s{sT1}, v{TT+j}" for j in range(3)] + ["s_barrier"]
    kr = k_reads(0)
    qr = [f"ds_read_b128 {v(Q+4*s_,4)}, v{TT+(s_>>1)} offset:{1024*(s_&1)}" for s_ in range(8)]
    for s_ in range(7): o += [qr[s_], kr[s_]]
    o += [qr[7], "s_waitcnt lgkmcnt(13)", kr[7]]
    mm = qk_mfmas(0, "0")
    gaps = {}
    for k in range(7): gaps[k] = [f"s_waitcnt lgkmcnt({max(0, 12-2*k)})"]
    zs = [f"v_mov_b32 v{O+i}, 0" for i in range(64)]
    spread(zs, 0, 7, gaps)
    for k in range(7): gaps[k] = gaps[k][1:] + gaps[k][:1]
    o += interleave(mm, gaps)
    return o
def at_step1(extra):
    o = ["s_barrier"] + k_reads(1) + v_reads(0, 0)[:6] + extra
    o += max_ops(S[0])
    o += [f"v_sub_f32 v{NEGM+i}, 0, v{D}" for i in range(16)]
    o += ["s_waitcnt lgkmcnt(6)", "s_nop 0"]
    mm = qk_mfmas(1, v(NEGM, 16))
    gaps = {}
    ops = [f"v_sub_f32 v{S[0]+i}, v{S[0]+i}, v{D}" for i in range(16)] + sm_ops(0, None)
    spread(ops, 0, 7, gaps)
    gaps[0] = v_reads(0, 0)[6:] + gaps[0]
    gaps[1] = v_reads(0, 1)[:4] + gaps[1]
    gaps[2] = v_reads(0, 1)[4:] + gaps[2]
    o += interleave(mm, gaps) + ["s_waitcnt lgkmcnt(0)"]
    return o
NLDS = 7 * REG + 18432
n_rd = [f"v_mov_b32 v7, {NLDS}", "ds_read_b32 v7, v7"]
n_get = [f"v_readfirstlane_b32 s{sNonce}, v7"]
def n_iss(r): return [f"buffer_load_dword v{r}, off, {srd(rDBG)}, 0 sc1"]
def n_fin(r):
    polln[0] += 1
    n = polln[0]
    return [f"s_mov_b32 s{sSpin}, 200000", f"L_n{n}:", f"v_readfirstlane_b32 s{sNonce}, v{r}", f"s_cmp_lg_u32 s{sNonce}, 0", f"s_cbranch_scc1 L_nd{n}",
            f"s_sub_u32 s{sSpin}, s{sSpin}, 1", f"s_cbranch_scc1 L_nd{n}"] + n_iss(r) + ["s_waitcnt vmcnt(0)", f"s_branch L_n{n}", f"L_nd{n}:"]
def at_last():
    L0 = LS[1]; L1 = LS[1] + 1
    o = ["s_barrier"] + n_rd + pv_mfmas(1)
    o += [f"v_add_f32 v{L0}, v{L0}, v{L1}", f"v_mov_b32 v{L1}, v{L0}", "s_nop 1", f"v_permlane32_swap_b32 v{L0}, v{L1}", "s_nop 0",
          f"v_add_f32 v{L0}, v{L0}, v{L1}", f"v_rcp_f32 v{L0}, v{L0}"]
    o += [f"s_mul_i32 s{sOb}, s{sBr}, 24", f"s_mul_i32 s{sOb2}, s{sB}, 3", f"s_add_u32 s{sOb}, s{sOb}, s{sOb2}", f"s_add_u32 s{sOb}, s{sOb}, s{sWave}",
          f"s_lshl_b32 s{sOb}, s{sOb}, 5", f"s_add_u32 s{sOb}, s{sOb}, s{sHc}", f"s_lshl_b32 s{sOb}, s{sOb}, 13", f"s_add_u32 s{sOb2}, s{sOb}, 4096", "s_nop 1"]
    for s_ in range(8):
        src = O + 16 * (s_ >> 1) + 8 * (s_ & 1)
        for t in range(8): o.append(f"v_mul_f32 v{src+t}, v{src+t}, v{L0}")
        for t in range(4): o.append(f"v_cvt_pk_bf16_f32 v{VF+4*s_+t}, v{src+2*t}, v{src+2*t+1}")
        o.append(f"buffer_store_dwordx4 {v(VF+4*s_,4)}, v1, {srd(rWS)}, s{sOb if s_<4 else sOb2} offen offset:{1024*(s_&3)}" + os.environ.get("SM", " sc1").replace("_", " "))
    return o + ["s_waitcnt lgkmcnt(0)"]
def flag_store():
    return ["s_waitcnt vmcnt(0)"] + [f"s_lshr_b32 s{sT0}, s{sOb}, 6", f"s_add_u32 s{sT0}, s{sT0}, {FLAGB}", f"v_mov_b32 v{TT}, s{sNonce}", f"v_mov_b32 v{TT+1}, 0",
            "s_mov_b64 exec, 1", f"buffer_store_dword v{TT}, v{TT+1}, {srd(rWS)}, s{sT0} offen sc1", "s_mov_b64 exec, -1"]
def bar_loop(n, lab):
    return [f"s_mov_b32 s{sCnt}, {n}", f"{lab}:", "s_barrier", f"s_sub_u32 s{sCnt}, s{sCnt}, 1", f"s_cmp_lg_u32 s{sCnt}, 0", f"s_cbranch_scc1 {lab}"]

vXD = [8, 9]; vWq = 10
XS = [GA + 81920, KRING + 16384, VRING + 16384]
qset = []
e = qset.append
e(f"s_mov_b32 s12, s{sWave}")
e("v_lshrrev_b32 v6, 4, v0"); e("v_and_b32 v7, 7, v0"); e("v_xor_b32 v7, v7, v6"); e("v_lshlrev_b32 v7, 4, v7")
e(f"v_lshrrev_b32 v{vXD[0]}, 3, v0"); e(f"v_mul_u32_u24 v{vXD[0]}, 1280, v{vXD[0]}"); e(f"v_add_u32 v{vXD[0]}, v{vXD[0]}, v7")
e("s_and_b32 s13, s12, 1"); e("s_lshl_b32 s13, s13, 6"); e(f"v_xor_b32 v{vXD[0]}, s13, v{vXD[0]}"); e(f"v_xor_b32 v{vXD[1]}, 64, v{vXD[0]}")
e(f"s_mul_i32 s{sXb}, s{sB}, 122880"); e("s_mul_i32 s13, s12, 30720"); e(f"s_add_u32 s{sXb}, s{sXb}, s13")
e("s_mul_i32 s15, s12, 3072")
e("v_lshlrev_b32 v7, 2, v6"); e(f"v_and_b32 v{vWq}, 15, v0"); e(f"v_xor_b32 v7, v7, v{vWq}"); e("v_lshlrev_b32 v7, 4, v7"); e(f"v_lshl_add_u32 v{vWq}, v6, 13, v7")
e(f"s_lshl_b32 s{sWb}, s{sH}, 8"); e("s_lshl_b32 s13, s12, 16"); e(f"s_add_u32 s{sWb}, s{sWb}, s13")
e("s_lshl_b32 s14, s12, 11")
vm = VM()
def w_issue(t):
    sl = GA + ((t + 2) % 5) * 16384
    o = []
    for hd in range(2):
        o += [f"s_add_u32 m0, s14, {sl + 8192*hd}", f"s_add_u32 s{sT0}, s{sWb}, {t*262144 + 1024*hd}", f"s_add_u32 s{sT1}, s{sWb}, {t*262144 + 1024*hd + 32768 - 1024}",
              f"buffer_load_dwordx4 v{vWq}, {srd(rW)}, s{sT0} offen lds", f"buffer_load_dwordx4 v{vWq}, {srd(rW)}, s{sT1} offen offset:1024 lds"]
    vm.issue(("w", t), 4)
    return o
def x_issue(j):
    o = [f"s_add_u32 m0, s15, {XS[j % 3]}"]
    for i in range(3):
        o += [f"s_add_u32 s{sT0}, s{sXb}, {j*128 + i*(10240 - 1024)}", f"buffer_load_dwordx4 v{vXD[i&1]}, {srd(rX)}, s{sT0} offen offset:{1024*i} lds"]
    vm.issue(("x", j), 3)
    return o
def q_need(t):
    tags = [x for x in (("w", t), ("x", t // 2)) if vm.has(x)]
    if not tags: return []
    last = max(tags, key=lambda tg: max(i for i, x in enumerate(vm.q) if x == tg))
    return [vm.wait(last)]
def q_pro(): return x_issue(0) + w_issue(0) + w_issue(1) + x_issue(1) + w_issue(2) + w_issue(3)
def q_iss(t):
    o = []
    if t % 2 == 0 and t // 2 + 2 < 10: o += x_issue(t // 2 + 2)
    if t + 4 < NQ: o += w_issue(t + 4)
    return o
cq = qset + q_pro() + pro + q_need(0)
for t in range(NQ):
    cq += ["s_barrier"] + q_iss(t) + (q_need(t + 1) if t + 1 < NQ else [])
emit(cq)
emit(stamp(1))
A.label("L_head")
a0 = at_step0(); a1 = at_step1([])
emit(a0); emit(a1)
I(f"s_cmp_eq_u32 s{sPass}, 0"); I("s_cbranch_scc1 L_noflag")
emit(n_get + flag_store())
if env("RB", 0): emit([f"v_lshlrev_b32 v6, 7, v0", f"buffer_load_dword v6, v6, {srd(rWS)}, s{sOb} offen sc1"])
if env("RB", 0) == 2: emit([f"v_lshlrev_b32 v7, 7, v0", f"buffer_load_dword v7, v7, {srd(rWS)}, s{sOb} offen offset:64 sc1"])
A.label("L_noflag")
I(f"s_mov_b32 s{sCnt}, 8"); I("s_branch L_a2")
A.label("L_aloop")
st4 = [at_step(4), at_step(5), at_step(6)]
st4.append(at_step(7, extra=[f"s_sub_u32 s{sCnt}, s{sCnt}, 1"]))
emit(st4[0]); emit(st4[1]); A.label("L_a2"); emit(st4[2]); emit(st4[3])
I(f"s_cmp_lg_u32 s{sCnt}, 0"); I("s_cbranch_scc1 L_aloop")
a32 = at_step(32, qk=False)
a33 = at_last()
emit(a32); emit(a33)
if ST:
    I(f"s_cmp_lg_u32 s{sPass}, 0"); I("s_cbranch_scc1 L_stx"); emit(stamp(2)); A.label("L_stx")
I(f"s_add_u32 s{sHc}, s{sHc}, 4")
I(f"s_add_u32 s{sPass}, s{sPass}, 1"); I(f"s_cmp_lt_u32 s{sPass}, 2"); I("s_cbranch_scc1 L_head")
import re as _re
def ren67(l): return [_re.sub(r"\bv7\b", "v251", _re.sub(r"\bv6\b", "v250", x)) for x in l]
SAMP = f"buffer_load_dword v6, v{vPOLL}, {srd(rWS)}, 0 offen sc1"
CHK = f"v_cmp_ne_u32 vcc, s{sNonce}, v6"
EC = env("EC", 0); EG = env("EG", 0); NE = env("NE", 5)
if EC:
    ct = [f"s_cmp_ge_u32 s{sI}, 30", "s_cbranch_scc1 L_cfin"] + ren67(tail_bases() + [SAMP]) + ren67(tail_addr_setup())[:0] + zero_acc()
    ct += [x.replace("v6", "v251").replace("v7", "v253") for x in tail_addr_setup()]
    ct += flag_store() + stamp(3) + ren67([CHK]) + ["s_cbranch_vccz L_early", "s_branch L_late"]
else:
    ct = [f"s_cmp_ge_u32 s{sI}, 30", "s_cbranch_scc1 L_cfin"] + ren67(tail_addr_setup() + tail_bases()) + zero_acc() + ["s_barrier"] + tail_pre_reads()
    ct += flag_store() + stamp(3) + tail_refill() + ["s_branch L_tail"]
emit(ct)
A.label("L_cfin"); emit(flag_store()); emit(stamp(3)); I("s_endpgm")
for blk in ool: emit(blk)
errs = check_hazards(pro + a0 + a1 + st4[2] + st4[3] + st4[0] + st4[1] + st4[2] + st4[3] + a32 + a33 + a0 + a1 + flag_store() + st4[2], "C")
errs += check_hazards(a32 + a33 + ct, "Ct")
def with_ool(step):
    t = []
    for x in step:
        t.append(x)
        if x.startswith("s_cbranch") and "L_rare" in x:
            lab = x.split()[1] + ":"
            t += [b for b in ool if b[0] == lab][0]
    return t
errs += check_hazards(a1 + with_ool(st4[2]) + with_ool(st4[3]) + with_ool(st4[0]) + with_ool(st4[1]) + with_ool(st4[2]) + with_ool(st4[3]) + with_ool(a32) + a33, "Crare")

QACC = 8; XF = [104, 128]; WF = [152, 168]; QB = 184
XRL = 208; XRH = 212; WR = [216, 217]
g = []
e = g.append
e("L_g:")
e("s_setprio %d" % env("PRIOG", 0))
e(f"s_sub_u32 s12, s{sWave}, 4")
e("s_lshl_b32 s14, s12, 11")
gpro2 = []
e = gpro2.append
e("v_and_b32 v6, 31, v0"); e("v_lshrrev_b32 v7, 5, v0"); e("v_lshrrev_b32 v8, 1, v6"); e("v_and_b32 v8, 7, v8"); e("v_xor_b32 v8, v8, v7"); e("v_lshlrev_b32 v8, 4, v8")
e(f"v_lshl_add_u32 v{XRL}, v6, 7, v8")
for c_ in range(1, 4): e(f"v_xor_b32 v{XRL+c_}, {32*c_}, v{XRL}")
for c_ in range(4): e(f"v_add_u32 v{XRH+c_}, {XS[0]}, v{XRL+c_}")
e("v_lshrrev_b32 v6, 2, v0"); e("v_and_b32 v6, 3, v6")
e("v_lshrrev_b32 v8, 4, v0"); e("v_and_b32 v8, 1, v8"); e("v_lshlrev_b32 v8, 5, v8")
e("v_and_b32 v5, 1, v0"); e("v_lshl_add_u32 v8, v5, 4, v8"); e("v_and_b32 v5, 2, v0"); e("v_lshl_add_u32 v8, v5, 2, v8")
e("v_lshl_add_u32 v8, v6, 8, v8"); e("v_lshl_add_u32 v8, v6, 6, v8"); e("v_lshl_add_u32 v8, v7, 11, v8")
e("s_lshl_b32 s13, s12, 6"); e("v_xor_b32 v8, s13, v8")
e(f"v_add_u32 v{WR[0]}, {GA}, v8"); e(f"v_add_u32 v{WR[1]}, 49152, v{WR[0]}")
e(f"s_mov_b32 s{sPass}, 0")
def q_reads(t):
    sl = (t + 2) % 5; hi = sl // 3; so = (sl % 3) * 16384; par = t & 1
    xs = (t // 2) % 3
    o = []
    for s_ in range(2):
        o += [f"ds_read_b64_tr_b16 {v(WF[par]+s_*4+2*ee,2)}, v{WR[hi]} offset:{so+4096*s_+1024*ee}" for ee in range(2)]
        o += [f"ds_read_b128 {v(XF[par]+(s_*3+qb)*4,4)}, v{(XRH if xs == 0 else XRL)+2*par+s_} offset:{(0 if xs == 0 else XS[xs])+4096*qb}" for qb in range(3)]
    for s_ in range(2):
        o += [f"ds_read_b64_tr_b16 {v(WF[par]+8+s_*4+2*ee,2)}, v{WR[hi]} offset:{so+8192+4096*s_+1024*ee}" for ee in range(2)]
    return o
def q_mfmas(t):
    par = t & 1
    return [mf(QACC+48*hd+16*qb, WF[par]+8*hd+s_*4, XF[par]+(s_*3+qb)*4, "0" if (t == 0 and s_ == 0) else None) for hd in range(2) for s_ in range(2) for qb in range(3)]
def q_out(hd):
    o = []
    for qb in range(3):
        for hf in range(2):
            src = QACC + 48 * hd + 16 * qb + 8 * hf
            o += [f"v_mul_f32 v{src+t}, s{sT0}, v{src+t}" for t in range(8)]
            dst = QB + (qb * 2 + hf) * 4
            o += [f"v_cvt_pk_bf16_f32 v{dst+t}, v{src+2*t}, v{src+2*t+1}" for t in range(4)]
            o.append(f"ds_write_b128 v{6 if qb < 2 else 7}, {v(dst,4)} offset:{qb*8192 + hf*1024}")
    return o
CASS = -1
CAS = ["s_mov_b64 exec, 1", f"buffer_atomic_cmpswap v[230:231], off, {srd(rDBG)}, 0 sc1", "s_mov_b64 exec, -1"]
qb_ = []
QST = {0: 1, 5: 2, 10: 3, 15: 7}
for t in range(NQ):
    qb_.append("s_barrier")
    if t in QST: qb_ += stampq(QST[t], True)
    if t == CASS: qb_ += ["s_cmp_lg_u32 s15, 3", "s_cbranch_scc1 L_nocas2"] + CAS + ["L_nocas2:"]
    rd = q_reads(t)
    if t == 0:
        qb_ += rd
    else:
        gaps = {-1: rd[:2]}
        spread(rd[2:], 0, 5, gaps)
        qb_ += interleave(q_mfmas(t - 1), gaps)
    qb_.append("s_waitcnt lgkmcnt(0)")
gaps = {5: [f"s_mov_b32 s{sT0}, {fbits(CSC)}", f"s_add_u32 s{sT1}, s14, {GA}", f"v_add_u32 v6, s{sT1}, v1", f"v_add_u32 v7, s{sReg}, v1"], 6: ["s_nop 5"]}
spread(q_out(0), 7, 11, gaps)
qb_ += interleave(q_mfmas(NQ - 1), gaps)
qb_ += ["s_waitcnt vmcnt(0) lgkmcnt(0)", "s_barrier", "s_barrier"] + q_out(1) + ["s_waitcnt lgkmcnt(0)"]
if flag("qnl"): qb_ = [x for x in qb_ if not (x.startswith("buffer_load") and x.endswith("lds"))]
if flag("qnr"): qb_ = [x for x in qb_ if not x.startswith("ds_read")]
if flag("qnm"): qb_ = [x for x in qb_ if not x.startswith("v_mfma")]
emit(g)
PFG = env("PFG", 64)
I("s_mov_b32 s15, s12"); I(f"s_cmp_lg_u32 s15, 3"); I("s_cbranch_scc1 L_nocas")
TL = env("TL", 47)
if TL & 16:
    I(f"v_mul_u32_u24 v2, {64*1280}, v0"); I(f"buffer_load_dword v220, v2, {srd(rWO)}, s{sWOb} offen")
I("s_mov_b64 exec, 1"); I("v_mov_b32 v231, 0")
if TL & 1:
    I("s_load_dword s18, s[38:39], 128"); I(f"buffer_load_dword v221, off, {srd(rDBG)}, 0 offset:128")
I(f"s_mul_i32 s16, s{sBr}, 24"); I(f"s_mul_i32 s17, s{sB}, 3"); I("s_add_u32 s16, s16, s17"); I("s_lshl_b32 s16, s16, 5"); I(f"s_add_u32 s16, s16, s{sH}"); I("s_lshl_b32 s16, s16, 13")
I("s_lshr_b32 s17, s16, 6"); I(f"s_add_u32 s17, s17, {FLAGB}")
if TL & 2: I(f"buffer_store_dword v231, off, {srd(rWS)}, s16 sc1")
if TL & 4: I(f"buffer_store_dword v231, off, {srd(rWS)}, s17 sc1")
if TL & 8:
    I(f"s_min_u32 s16, s{sMt}, 11"); I("s_mul_i32 s16, s16, 163840"); I(f"s_mul_i32 s17, s{sBr}, 1280"); I("s_add_u32 s16, s16, s17"); I(f"s_add_u32 s16, s16, s{sWOb}")
    I(f"buffer_load_dword v222, off, {srd(rOUT)}, s16")
if TL & 32:
    I(f"s_lshl_b32 s16, s{sB}, 5"); I(f"s_add_u32 s16, s16, s{sH}"); I("s_lshl_b32 s16, s16, 18"); I(f"s_add_u32 s17, s16, {4 << 18}")
    for j_, (r_, so) in enumerate(((rK, 16), (rV, 16), (rK, 17), (rV, 17))): I(f"buffer_load_dword v{223+j_}, off, {srd(r_)}, s{so}")
I("s_mov_b64 exec, -1"); I("s_waitcnt lgkmcnt(0)")
I(f"s_cmp_ge_u32 s2, {env('NCAS', 256)}"); I("s_cbranch_scc1 L_pfd")
I("s_memrealtime s[16:17]"); I("s_waitcnt lgkmcnt(0)"); I("s_or_b32 s16, s16, 1"); I("v_mov_b32 v230, s16")
if CASS < 0: emit(CAS)
I("s_branch L_pfd")
A.label("L_nocas")
if PFG and not env('PFO', 0):
    sh = {16: 4, 64: 6, 128: 7}[PFG]
    ld = "buffer_load_dwordx4 {}" if PFG == 16 else "buffer_load_dword {}"
    dst = (lambda j: v(220 + 4 * j, 4)) if PFG == 16 else (lambda j: v(220 + j))
    I(f"s_cmp_eq_u32 s15, 1"); I("s_cbranch_scc1 L_pfx")

    lpr = 256 // PFG
    rpi = 64 // lpr
    I(f"s_mul_i32 s16, s{sB}, {80*8192}"); I(f"s_lshl_b32 s17, s{sH}, 8"); I("s_add_u32 s16, s16, s17"); I(f"s_lshl_b32 s17, s15, 9"); I("s_add_u32 s16, s16, s17")
    I(f"v_lshrrev_b32 v2, {int(math.log2(lpr))}, v0"); I("v_lshlrev_b32 v2, 13, v2"); I(f"v_and_b32 v3, {lpr-1}, v0"); I(f"v_lshl_add_u32 v2, v3, {sh}, v2")
    for j in range((80 + rpi - 1) // rpi):
        I(ld.format(f"{dst(j)}, v2, {srd(rW)}, s16 offen")); I(f"s_add_u32 s16, s16, {rpi*8192}")
    I("s_branch L_pfd")
    A.label("L_pfx")
    I(f"s_mul_i32 s16, s{sB}, 122880"); I(f"s_and_b32 s17, s{sI}, 3"); I("s_mul_i32 s17, s17, 30720"); I("s_add_u32 s16, s16, s17")
    I(f"v_lshlrev_b32 v2, {sh}, v0")
    for j in range((30720 + 64 * PFG - 1) // (64 * PFG)):
        I(ld.format(f"{dst(j)}, v2, {srd(rX)}, s16 offen")); I(f"s_add_u32 s16, s16, {64*PFG}")
    A.label("L_pfd")
emit(gpro2)
emit(qb_)
G0 = 2
A.label("L_go")
I(f"s_cmp_ge_u32 s{sI}, 30"); I("s_cbranch_scc1 L_end")
emit(tail_addr_setup())
go = [f"s_mul_i32 s{sWb}, s12, {1024*1280}", f"s_add_u32 s{sWb}, s{sWb}, s{sWOb}", f"s_lshl_b32 s{sXb}, s12, 16", f"s_add_u32 s{sXb}, s{sXb}, s{sOI}",
      f"s_lshl_b32 s{sHc}, s12, 3"]
sRot = 24; sOh = 16; sWh = 20; RT = env("RT", 0)
go += [f"s_mul_i32 s{sRot}, s{sMt}, {env('RM', 0)}", f"s_mul_i32 s{sT0}, s{sNt}, {env('RN', 1)}", f"s_add_u32 s{sRot}, s{sRot}, s{sT0}"]
for hd in range(4):
    go += [f"s_add_u32 s{sT0}, s{sRot}, {hd}", f"s_and_b32 s{sT0}, s{sT0}, 3", f"s_lshl_b32 s{sOh+hd}, s{sT0}, {11 if RT else 13}", f"s_add_u32 s{sOh+hd}, s{sOh+hd}, s{sXb}",
           f"s_mul_i32 s{sWh+hd}, s{sT0}, {(32 if RT else 128)*1280}", f"s_add_u32 s{sWh+hd}, s{sWh+hd}, s{sWb}"]
go += poll_addr(3, sHc, None if RT else sRot)
RS = env("RS", 0); sOs = 26; sWs = 30; sTb = 25
if RS:
    go += [f"s_mul_i32 s{sTb}, s{sMt}, {RS}"]
    for k_ in range(4):
        go += [f"s_add_u32 s{sT0}, s{sTb}, {k_}", f"s_and_b32 s{sT0}, s{sT0}, 3", f"s_lshl_b32 s{sOs+k_}, s{sT0}, 11", f"s_mul_i32 s{sWs+k_}, s{sT0}, {32*1280}"]
go += tail_h0(sOb) + [f"s_mul_i32 s{sOb}, s{sOb}, {128*1280}", f"s_add_u32 s{sOb}, s{sOb}, s{sWOb}"]
PS = env("PS", 3); LA = env("LA", 4); PL = env("PL", 2); R2 = env("R2", 28); OBG = 184; NSET = 7
R2L = eval(os.environ.get("R2L", "[34,35]"))
vm = VM()
seq = [("W", c) for c in range(16)] + [("T", c) for c in (0, 1, 2, 3, 5, 6, 7)]
def wo_issue(ch, slot):
    vm.issue(ch, 4)
    if ch[0] == "W" and RS: return [f"s_add_u32 s{sTb}, s{sWh + ch[1] // 4}, s{sWs + ch[1] % 4}"] + wo_dma(sTb, 0, ('s', slot * 4096))
    if ch[0] == "W" and RT: return wo_dma(sWh + ch[1] % 4, 128 * (ch[1] // 4), ('s', slot * 4096))
    if ch[0] == "W": return wo_dma(sWh + ch[1] // 4, 32 * (ch[1] % 4), ('s', slot * 4096))
    return wo_dma(sOb, 32 * ch[1], ('s', slot * 4096))
w_iss = {}; w_rd = {}; o_iss = {}; mm_done = {}; fl_iss = {}; fl_ok = set()
nw = 0; nr = 0; no = 0; nm = 0; t4 = False
log = []
WSP = env('WSP', 4)
for S_ in range(G0, 2 * NA):
    go.append("s_barrier")
    a2 = S_ - NA
    body = []; lg = []
    if S_ == NA - 3: go += n_rd
    if S_ == NA - 2: go += n_get
    do_m = nm < 16 and nm in o_iss and o_iss[nm] <= S_ - LA and nm in w_rd
    do_r = nr < 19 and nr in w_iss and w_iss[nr] <= S_ - (LA if nr < 16 else env("LAT", 2)) and (nr < NSET or (nr - NSET) in mm_done or (do_m and nm == nr - NSET))
    if do_m and vm.has(("o", nm)): go.append(vm.wait(("o", nm)))
    if do_r and vm.has(seq[nr]): go.append(vm.wait(seq[nr]))
    rd = f_reads(nr % 4, (nr + 5) % NSET) if do_r else []
    early = do_r and not (do_m and nm == nr - NSET)
    if do_m:
        gaps = {}
        if early: spread(rd, -1, 2, gaps)
        go += interleave(o_mfmas((nm + 5) % NSET, nm % 4, first=(nm == 0), OB=OBG), gaps)
        if not early: go += rd
        mm_done[nm] = S_; lg.append(f"M{nm}"); nm += 1
    else:
        go += rd
    if do_r: w_rd[nr] = S_; lg.append(f"r{nr}"); nr += 1
    go.append("s_waitcnt lgkmcnt(0)")
    for _ in range(env("RPS", 1) - 1):
        if 16 <= nr < 19 and nr in w_iss and w_iss[nr] <= S_ - env("LAT", 2) and (nr - NSET) in mm_done:
            if vm.has(seq[nr]): go.append(vm.wait(seq[nr]))
            go += f_reads(nr % 4, (nr + 5) % NSET) + ["s_waitcnt lgkmcnt(0)"]
            w_rd[nr] = S_; lg.append(f"r{nr}"); nr += 1
    rate = 2 if (a2 >= R2 or S_ in R2L) else 1
    TS = env("TS", 63)
    if TS and S_ >= TS: rate = env("TRATE", 2)
    RL = eval(os.environ.get("RL", "{37:4,44:4,45:0,46:0,47:0,41:0,42:0,43:0,51:4,48:2,49:2,50:1,52:0,53:0,54:0,58:4,55:1,56:0,57:0}"))
    if S_ in RL: rate = RL[S_]
    if S_ in eval(os.environ.get("SKIP", "[]")): rate = 0
    for _ in range(rate):
        can_w = nw < len(seq) and (nw < 4 or (nw - 4) in w_rd) and (a2 >= 0 or S_ % WSP == WSP - 1 or S_ in R2L or S_ in RL) and (nw < 16 or S_ >= TS) and (nw < env("W7N", 7) or S_ >= env("W7S", 34))
        can_o = no < 16 and a2 >= PS and (no < 4 or (no - 4) in mm_done) and (no // 4 in fl_ok or (no // 4 in fl_iss and fl_iss[no // 4] <= S_ - PL))
        if can_w and (not can_o or (nw < 16 and nw <= no + 2)):
            go += wo_issue(seq[nw], nw % 4); w_iss[nw] = S_; lg.append("w%s%d" % seq[nw]); nw += 1
        elif can_o:
            hd = no // 4
            if hd not in fl_ok:
                if vm.has(("f", hd)): go.append(vm.wait(("f", hd)))
                polln[0] += 1; n_ = polln[0]
                go += [f"s_mov_b32 s{sSpin}, 200000", f"L_poll{n_}:", f"v_cmp_ne_u32 vcc, s{sNonce}, v6", f"s_sub_u32 s{sSpin}, s{sSpin}, 1", f"s_cbranch_scc1 L_pd{n_}",
                       f"s_and_b32 s{sT0}, vcc_lo, {3 << (2 * hd)}", f"s_cbranch_scc0 L_pd{n_}",
                       f"buffer_load_dword v6, v{vPOLL}, {srd(rWS)}, 0 offen sc1", "s_waitcnt vmcnt(0)", f"s_branch L_poll{n_}", f"L_pd{n_}:"]
                fl_ok.add(hd); lg.append(f"P{hd}")
            go += ([f"s_add_u32 s{sTb}, s{sOh + no // 4}, s{sOs + no % 4}"] + o_loads(sTb, 0, no % 4, OB=OBG) if RS else o_loads(sOh + no % 4, 4 * (no // 4), no % 4, OB=OBG) if RT else o_loads(sOh + no // 4, no % 4, no % 4, OB=OBG)); vm.issue(("o", no), 4); o_iss[no] = S_; lg.append(f"o{no}"); no += 1
        elif not t4 and a2 >= env("T4S", 1):
            go += wo_issue(("T", 4), 4); t4 = True; lg.append("wT4")
    hd = len(fl_iss)
    if hd < 4 and a2 >= PS - PL and len(fl_ok) == hd and no >= 4 * hd - PL:
        go.append(f"buffer_load_dword v6, v{vPOLL}, {srd(rWS)}, 0 offen sc1"); vm.issue(("f", hd)); fl_iss[hd] = S_; lg.append(f"f{hd}")
    if EG and S_ == 2 * NA - 2:
        assert nm == 16 and no == 16 and nw >= 16 and len(fl_ok) == 4
        go += tail_bases() + [SAMP]; vm.issue("samp"); lg.append("samp")
    assert len(vm.q) <= 63
    log.append(f"{S_}:" + ",".join(lg))
if flag("log"): print(" ".join(log))
assert nm == 16 and nr == 19 and nw == len(seq) and t4, (nm, nr, nw, t4)
if EG:
    go += ([vm.wait("samp")] if vm.has("samp") else []) + [CHK, "s_cbranch_vccz L_gearly"]
    for _ in range(env("GSP", 1)): go += [SAMP, "s_waitcnt vmcnt(0)", CHK, "s_cbranch_vccz L_gearly"]
else:
    go += tail_bases()
DUM = f"buffer_load_dword v7, v255, {srd(rDBG)}, 0 offen"
if flag("nowo") or flag("noo"): go = ["v_mov_b32 v255, 0x1000"] + go
if flag("nowo"): go = [DUM if (x.startswith("buffer_load") and srd(rWO) in x) else x for x in go]
if flag("noo"): go = [DUM if (x.startswith("buffer_load_dwordx4") and srd(rWS) in x) else x for x in go]
if flag("onosc"): go = [x.replace(" sc1", "") if x.startswith("buffer_load_dwordx4") else x for x in go]
if flag("ofake"): go = [x.replace(srd(rWS), srd(rK)) if x.startswith("buffer_load_dwordx4") else x for x in go]
if flag("wofake"): go = [x.replace(f"dwordx4 v{vWD},", "dwordx4 v1,") for x in go]
if flag("nord"): go = [x for x in go if not x.startswith("ds_read")]
if flag("nomm"): go = [x for x in go if not x.startswith("v_mfma")]
go += ["s_barrier", "s_branch L_tail"]
if EG:
    go += ["L_gearly:"]
    for c in range(8): go += o_loads(sXb, c, c)
    go += ["s_barrier"] + stamp(4) + ["s_branch L_tail2"]
emit(go)
errs += check_hazards(g + gpro2 + qb_, "G") + check_hazards(cq, "CQ")
errs += check_hazards(tail_addr_setup() + go, "Go")

A.label("L_ld")
I("s_setprio 3")
vm = VM()
emit(qset); emit(q_pro())
for p in range(2):
    I(f"s_lshl_b32 s{sKV+p}, s{sB}, 5"); I(f"s_add_u32 s{sKV+p}, s{sKV+p}, s{sH}")
    if p: I(f"s_add_u32 s{sKV+p}, s{sKV+p}, 4")
    I(f"s_lshl_b32 s{sKV+p}, s{sKV+p}, 18")
I("v_lshrrev_b32 v6, 4, v0")
I("v_and_b32 v7, 15, v0"); I("v_xor_b32 v7, v7, v6"); I("v_lshlrev_b32 v7, 4, v7"); I("v_lshl_add_u32 v248, v6, 8, v7")
for j in range(1, 4): I(f"v_xor_b32 v{248+j}, {64*j}, v248")
I("v_lshlrev_b32 v7, 2, v6"); I("v_and_b32 v5, 15, v0"); I("v_xor_b32 v7, v7, v5"); I("v_lshlrev_b32 v7, 4, v7"); I("v_lshl_add_u32 v252, v6, 8, v7")
I("v_mov_b32 v253, 0")
KR = env("KR", 0)
I(f"s_mul_i32 s25, s{sI}, {KR}"); I("s_and_b32 s26, s2, 7"); I(f"s_mul_i32 s26, s26, {env('KX', 4)}"); I("s_add_u32 s25, s25, s26"); I("s_and_b32 s25, s25, 31"); I("s_lshl_b32 s25, s25, 13")
for r_ in range(4): emit(tail_h0(20 + r_, r_) + [f"s_mul_i32 s{20+r_}, s{20+r_}, {128*1280}", f"s_add_u32 s{20+r_}, s{20+r_}, s{sWOb}"])
emit(tail_addr_setup())
if env("TW", 0):
    for r_ in (rK, rV): I(f"buffer_load_dword v247, v253, {srd(r_)}, s{sKV} offen"); vm.issue("tw")
def kv_issue(kind, it):
    p, t = divmod(it, 32)
    base = (KRING if kind == "K" else VRING) + (t % 4) * 8192
    o = []
    for half in range(2):
        if KR:
            if half == 0: o += [f"s_add_u32 s{sT0}, s25, {t*8192}", f"s_and_b32 s{sT0}, s{sT0}, {0x3ffff}", f"s_mov_b32 m0, {base}", f"s_add_u32 s{sT0}, s{sT0}, s{sKV+p}"]
            else: o += [f"s_mov_b32 m0, {base + 4096}", f"s_add_u32 s{sT0}, s{sT0}, 4096"]
        else:
            o += [f"s_mov_b32 m0, {base + 4096*half}", f"s_add_u32 s{sT0}, s{sKV+p}, {t*8192 + 4096*half}"]
        for i in range(4):
            vo = 248 + i if kind == "K" else 252
            o.append(f"buffer_load_dwordx4 v{vo}, {srd(rK if kind=='K' else rV)}, s{sT0} offen offset:{1024*i} nt lds")
    vm.issue((kind, it), 8)
    if flag("noload"): return []
    return o
def use_step(kind, it):
    p, t = divmod(it, 32)
    return NQ + NA * p + t + (0 if kind == "K" else 1)
NS = NQ + 2 * NA
init = eval(os.environ.get("KVINIT", "[16,16,16,17,17,18,18,19]"))
order = [("K",0),("V",0),("K",1),("V",1),("K",2),("V",2),("K",3),("V",3)]
sched = {}
assert init[4] >= 16 and init[6] >= 16 and init[5] >= 18 and init[7] >= 18
for st_, it in zip(init, order): sched.setdefault(st_, []).append(it)
WD = env("WD", 4)
for it in range(4, 64):
    for kind in "KV": sched.setdefault(use_step(kind, it - WD) + 1 if it >= WD else 19, []).append((kind, it))
def free_step(addr):
    if addr < VRING: return use_step("K", 60 + addr // 8192) + 1
    if addr < GA: return use_step("V", 60 + (addr - VRING) // 8192) + 1
    return NQ + NA + env("LW", 30)
for r in range(4):
    for c in range(5):
        ad = r * REG + c * 4096
        sched.setdefault(free_step(ad), []).append(("W", r, c))
lastkv = max(s_ for s_, l in sched.items() if any(x[0] != "W" for x in l))
CAP = env("CAP", 63)
def do_issue(st_):
    for it in sched.get(st_, []):
        n = 4 if it[0] == "W" else 8
        if len(vm.q) + n > CAP:
            I(f"s_waitcnt vmcnt({CAP - n})"); vm.q = vm.q[len(vm.q) - (CAP - n):]
        if it[0] == "W":
            _, r, c = it
            emit(wo_dma(20 + r, 32 * c, ('c', r * REG + c * 4096))); vm.issue(it, 4)
        else:
            emit(kv_issue(*it))
        assert len(vm.q) <= 63, (st_, len(vm.q))
do_issue(-1)
emit(q_need(0))
for st_ in range(NS):
    I("s_barrier")
    if st_ == NQ + NA + 27:
        pass
    if st_ < NQ: emit(q_iss(st_))
    if EC and st_ == NS - 1: I(SAMP); vm.issue("samp")
    do_issue(st_)
    if st_ == NQ + 6: I(f"s_load_dword s{sNonce}, s[38:39], 0")
    if st_ == NQ + 16:
        emit(["s_waitcnt lgkmcnt(0)", f"s_cmp_lg_u32 s{sNonce}, 0", "s_cbranch_scc1 L_nok",
              "s_memrealtime s[16:17]", "v_mov_b32 v7, 0", "s_waitcnt lgkmcnt(0)", "s_or_b32 s16, s16, 1", "v_mov_b32 v6, s16",
              "s_mov_b64 exec, 1", f"buffer_atomic_cmpswap v[6:7], off, {srd(rDBG)}, 0 sc0 sc1", "s_mov_b64 exec, -1", "s_waitcnt vmcnt(0)",
              f"v_readfirstlane_b32 s{sNonce}, v6", f"s_cmp_lg_u32 s{sNonce}, 0", f"s_cselect_b32 s{sNonce}, s{sNonce}, s16", "L_nok:"] + [f"v_mov_b32 v6, {NLDS}", f"v_mov_b32 v7, s{sNonce}", "ds_write_b32 v6, v7", "s_waitcnt lgkmcnt(0)"])
    if st_ == NS - 8: emit(tail_bases() + zero_acc())
    if st_ + 1 < NQ: emit(q_need(st_ + 1))
    need = [(k, it) for k in "KV" for it in range(64) if use_step(k, it) == st_ + 1 and vm.has((k, it))]
    if need:
        last = max(need, key=lambda t: max(i for i, x in enumerate(vm.q) if x == t))
        I(vm.wait(last))
I(f"s_cmp_ge_u32 s{sI}, 30"); I("s_cbranch_scc1 L_end")
def tail_main(vm):
    o = []
    for c in range(8):
        if vm.has(c): o.append(vm.wait(c))
        if c >= 3: o.append(f"s_waitcnt lgkmcnt({8 if c < 7 else 0})")
        o += o_mfmas(c % 3, c)
        if c + 3 >= 5 and vm.has("rf"): o.append(vm.wait("rf"))
        if c + 3 < 8: o += f_reads((c + 3) % 5, c % 3)
    return o
if EC:
    lt = ["s_waitcnt vmcnt(0)", CHK, "s_cbranch_vccnz L_late", "L_early:"]
    vm = VM()
    for c in range(NE): lt += o_loads(sXb, c, c); vm.issue(c, 4)
    lt += ["s_barrier"] + stamp(4) + tail_pre_reads() + tail_refill(); vm.issue("rf", 12)
    for c in range(NE, 8): lt += o_loads(sXb, c, c); vm.issue(c, 4)
    lt += tail_main(vm) + ["s_branch L_red"]
    errs += check_hazards(lt, "E")
    emit(lt)
    lt = ["L_late:", "s_barrier"] + tail_pre_reads() + tail_refill()
else:
    lt = ["s_waitcnt vmcnt(0)", "s_barrier"] + tail_pre_reads() + tail_refill()
emit(lt)

tl = ["L_tail:"] + poll() + stamp(4)
vm = VM()
for c in range(8): tl += o_loads(sXb, c, c); vm.issue(c, 4)
tl += ["L_tail2:"] + tail_main(vm) + ["L_red:"]
tl += stamp(5)
tl += [f"v_add_u32 v6, s{sReg}, v1", "s_nop 7", "s_nop 2"]
for q in range(16): tl.append(f"ds_write_b128 v6, {v(ACC+4*q,4)} offset:{q*1024}")
tl += [f"s_lshl_b32 s{sT0}, s{sWave}, 11", f"v_add_u32 v2, s{sT0}, v1", f"v_add_u32 v3, {3*REG}, v2", f"v_add_u32 v4, {6*REG}, v2"]
tl += [f"s_lshl_b32 s{sT0}, s{sMt}, 1", f"s_lshr_b32 s{sT1}, s{sWave}, 2", f"s_add_u32 s{sT0}, s{sT0}, s{sT1}", f"s_mul_i32 s{sT0}, s{sT0}, 81920",
       f"s_mul_i32 s{sT1}, s{sBr}, 1280", f"s_add_u32 s{sT0}, s{sT0}, s{sT1}", f"s_add_u32 s{sT0}, s{sT0}, s{sWOb}",
       f"s_and_b32 s{sT1}, s{sWave}, 3", f"s_lshl_b32 s{sT1}, s{sT1}, 5", f"s_add_u32 s{sT0}, s{sT0}, s{sT1}",
       "v_and_b32 v6, 31, v0", "v_mul_u32_u24 v6, 2560, v6", "v_lshrrev_b32 v7, 5, v0", "v_lshl_add_u32 v5, v7, 4, v6"]
tl += ["s_waitcnt lgkmcnt(0)", "s_barrier"]
for r in range(8):
    for j in range(2):
        if r == 7 and j == 1: tl.append("s_waitcnt lgkmcnt(14)")
        tl.append(f"ds_read_b128 {v(OB+8*r+4*j,4)}, v{2 + r//3} offset:{(r%3)*REG + j*1024}")
for r in range(1, 8):
    tl.append(f"s_waitcnt lgkmcnt({14 - 2*r})")
    tl += [f"v_add_f32 v{OB+i}, v{OB+i}, v{OB+8*r+i}" for i in range(8)]
tl += [f"v_cvt_pk_bf16_f32 v{ACC+i}, v{OB+2*i}, v{OB+2*i+1}" for i in range(4)]
tl += [f"buffer_store_dwordx4 {v(ACC,4)}, v5, {srd(rOUT)}, s{sT0} offen"]
tl += stamp(6)
if ST and env("STM", 0): tl += ["v_mov_b32 v253, s92", f"buffer_store_dword v253, v255, {srd(rWS)}, s93 offen"]
tl += ["L_end:", "s_endpgm"]
emit(tl)
errs += check_hazards(lt + tl, "T")
for x in errs: print(x)
assert not errs

A.raw('.section .rodata,"a"')
A.raw(".p2align 6")
A.raw(f".amdhsa_kernel {NAME}")
for l in ("next_free_vgpr 256", "next_free_sgpr 96", "accum_offset 256", "group_segment_fixed_size 0", "kernarg_size 104",
          "user_sgpr_count 2", "user_sgpr_kernarg_segment_ptr 1", "system_sgpr_workgroup_id_x 1"):
    A.raw("  .amdhsa_" + l)
A.raw(".end_amdhsa_kernel")
open(out_path, "w").write(A.text())
```

```python
import sys, math, struct, os
from asmlib import *

ARGS = sys.argv[1:]
def flag(x): return ("--" + x) in ARGS
def env(x, d): return int(os.environ.get(x, str(d)))
out_path = [x for x in ARGS if not x.startswith("--")][0]
NAME = "concat_heads__gqa_block_cached__mha_block_cached__near_ridge_kernel"
ST = flag("stamp")

def fbits(x): return "0x%08x" % struct.unpack("<I", struct.pack("<f", x))[0]
CSC = (128 ** -0.5) * math.log2(math.e)
LTHR = float(2 ** env("LTHR", 20))

A = Asm()
hdr = open("concat_heads__gqa_block_cached__mha_block_cached__near_ridge.s.ref").read().split("\n")
for l in hdr:
    if l.startswith("; @launch"): A.raw("; @launch grid=(256,1,1) block=(512,1,1) lds=163840")
    elif l.startswith(";"): A.raw(l)
    else: break
A.raw('.amdgcn_target "amdgcn-amd-amdhsa--gfx950"')
A.raw(".text")
A.raw(f".globl {NAME}"); A.raw(".p2align 8"); A.raw(f".type {NAME},@function"); A.label(NAME)
I = A.i
def emit(lst):
    for x in lst:
        if x.endswith(":"): A.raw(x)
        else: I(x)

KRING = 0; VRING = 32768; GA = 65536; HAND = GA + 2 * 16384; REG = 20480
FLAGB = 12582912; WSN = FLAGB + 1536 * 128 + (65536 if ST else 0); STB = FLAGB + 1536 * 128
NQ = 20; NA = 34
sWave = 4; sBr = 5; sB = 6; sH = 7; sMt = 8; sNt = 9; sI = 10; sReg = 11
rX = 44; rW = 48; rK = 52; rV = 56; rWO = 60; rWS = 64; rOUT = 68; rDBG = 72
sNonce = 76; sT0 = 77; sT1 = 78; sCnt = 79; sPass = 80; sThr = 81; sKV = 82; sXb = 84; sWb = 85; sOb = 86; sOb2 = 87
sWOb = 88; sOI = 89; sSpin = 90; sHc = 91
def srd(r): return f"s[{r}:{r+3}]"

I("s_cmp_ge_u32 s2, 256"); I("s_cbranch_scc1 L_end")
I("s_load_dwordx16 s[16:31], s[0:1], 0")
I("s_load_dwordx8 s[32:39], s[0:1], 64")
I("s_load_dwordx2 s[40:41], s[0:1], 96")
if ST: I("s_memrealtime s[92:93]")
I("v_lshrrev_b32 v1, 6, v0")
I("v_and_b32 v0, 63, v0")
I("s_and_b32 s3, s2, 7")
I(f"v_readfirstlane_b32 s{sWave}, v1")
I(f"s_lshr_b32 s{sI}, s2, 3")
I(f"s_and_b32 s{sBr}, s3, 1")
I("s_lshr_b32 s3, s3, 1")
I(f"s_lshr_b32 s{sB}, s{sI}, 2")
I(f"s_add_u32 s{sH}, s{sI}, {env('HROT', 0)}"); I(f"s_and_b32 s{sH}, s{sH}, 3"); I(f"s_lshl_b32 s12, s3, 3"); I(f"s_add_u32 s{sH}, s{sH}, s12")
if env("MAP", 1) == 0:
    I(f"s_mul_i32 s12, s{sI}, 26"); I("s_lshr_b32 s12, s12, 8")
    I(f"s_mul_i32 s13, s12, 10"); I(f"s_sub_u32 s{sNt}, s{sI}, s13")
    I(f"s_mul_i32 s{sMt}, s3, 3"); I(f"s_add_u32 s{sMt}, s{sMt}, s12")
else:
    I(f"s_mul_i32 s12, s{sI}, 52"); I("s_lshr_b32 s12, s12, 8")
    I(f"s_mul_i32 s13, s12, 5"); I(f"s_sub_u32 s{sNt}, s{sI}, s13")
    I("s_and_b32 s13, s3, 1"); I("s_mul_i32 s13, s13, 5"); I(f"s_add_u32 s{sNt}, s{sNt}, s13")
    I("s_lshr_b32 s13, s3, 1"); I(f"s_mul_i32 s{sMt}, s13, 6"); I(f"s_add_u32 s{sMt}, s{sMt}, s12")
I(f"s_mul_i32 s{sReg}, s{sWave}, {REG}")
I("v_lshlrev_b32 v1, 4, v0")
for r, n in ((rX, 983040), (rW, 5242880), (rK, 67108864), (rV, 67108864), (rWO, 5242880), (rWS, WSN), (rOUT, 1966080), (rDBG, 256)):
    I(f"s_mov_b32 s{r+2}, {n}"); I(f"s_mov_b32 s{r+3}, 0x20000")
I(f"s_mul_i32 s{sOI}, s{sBr}, 12"); I(f"s_add_u32 s{sOI}, s{sOI}, s{sMt}"); I(f"s_lshl_b32 s{sOI}, s{sOI}, 19")
I(f"s_lshl_b32 s{sWOb}, s{sNt}, 7")
I("s_waitcnt lgkmcnt(0)")
I(f"s_cmp_eq_u32 s{sBr}, 0")
for r, a_, b_ in ((rX, 16, 26), (rK, 18, 28), (rV, 20, 30), (rW, 22, 32), (rWO, 24, 34)):
    I(f"s_cselect_b32 s{r}, s{a_}, s{b_}"); I(f"s_cselect_b32 s{r+1}, s{a_+1}, s{b_+1}")
for r, a_ in ((rOUT, 36), (rDBG, 38), (rWS, 40)):
    I(f"s_mov_b32 s{r}, s{a_}"); I(f"s_mov_b32 s{r+1}, s{a_+1}")
if ST:
    I(f"s_lshl_b32 s93, s2, 3"); I(f"s_add_u32 s93, s93, s{sWave}"); I("s_lshl_b32 s93, s93, 5"); I(f"s_add_u32 s93, s93, {STB}")
    if not env("STM", 0): I("v_mov_b32 v254, s92"); I("v_mov_b32 v255, 0"); I(f"buffer_store_dword v254, v255, {srd(rWS)}, s93 offen")
I(f"s_cmp_eq_u32 s{sWave}, 3"); I("s_cbranch_scc1 L_ld")
I(f"s_cmp_gt_u32 s{sWave}, 3"); I("s_cbranch_scc1 L_g")

def mf(d, a_, b_, c=None):
    cc = v(d, 16) if c is None else c
    return f"v_mfma_f32_32x32x16_bf16 {v(d,16)}, {v(a_,4)}, {v(b_,4)}, {cc}"
def spread(ops, g0, g1, gaps):
    n = g1 - g0 + 1
    for k in range(n):
        lo = len(ops) * k // n; hi = len(ops) * (k + 1) // n
        gaps.setdefault(g0 + k, []).extend(ops[lo:hi])
class VM:
    def __init__(self): self.q = []
    def issue(self, tag, n=1): self.q += [tag] * n
    def wait(self, tag):
        idx = max(i for i, t in enumerate(self.q) if t == tag)
        n = len(self.q) - 1 - idx
        assert n <= 63, n
        self.q = self.q[idx + 1:]
        return f"s_waitcnt vmcnt({n})"
    def has(self, tag): return tag in self.q
    def drain(self): self.q = []
stampn = [0]
def stampq(k, gq=False):
    o = stamp(k)
    if not o or (env("STM", 0) and gq): return []
    return [f"s_cmp_lg_u32 s{sPass}, {env('STP', 0)}", "s_cbranch_scc1 " + o[-1][:-1]] + o
def stamp(k):
    if not ST: return []
    stampn[0] += 1
    lab = f"L_st{stampn[0]}"
    return ["s_nop 0", f"s_cbranch_scc1 {lab}", "s_memrealtime s[94:95]", "s_waitcnt lgkmcnt(0)",
            "v_mov_b32 v254, s94", "v_mov_b32 v255, 0", f"buffer_store_dword v254, v255, {srd(rWS)}, s93 offen offset:{4*k}", f"{lab}:"][2:]

ACC = 8; FB = [72, 88, 104]; OB = 120
vWD = 2; vTR = [3, 4]; vPOLL = 5
def tail_addr_setup():
    o = []
    e = o.append
    e("v_lshrrev_b32 v6, 3, v0"); e("v_lshrrev_b32 v7, 2, v0"); e("v_and_b32 v7, 4, v7"); e(f"v_and_b32 v{vWD}, 7, v0"); e(f"v_xor_b32 v7, v7, v{vWD}")
    e(f"v_mul_u32_u24 v{vWD}, 1280, v6"); e(f"v_lshl_add_u32 v{vWD}, v7, 4, v{vWD}")
    e("v_lshrrev_b32 v6, 2, v0"); e("v_and_b32 v6, 3, v6")
    e("v_lshrrev_b32 v3, 4, v0"); e("v_and_b32 v3, 1, v3"); e("v_lshlrev_b32 v3, 5, v3")
    e("v_and_b32 v7, 1, v0"); e("v_lshl_add_u32 v3, v7, 4, v3"); e("v_and_b32 v7, 2, v0"); e("v_lshl_add_u32 v3, v7, 2, v3")
    e("v_lshl_add_u32 v3, v6, 7, v3"); e("v_lshrrev_b32 v6, 1, v6"); e("v_lshl_add_u32 v3, v6, 6, v3")
    e("v_lshrrev_b32 v7, 5, v0"); e("v_lshl_add_u32 v3, v7, 10, v3")
    e(f"v_add_u32 v3, s{sReg}, v3"); e("v_xor_b32 v4, 64, v3")
    return o
def wo_dma(sbase, krow, m0):
    o = [f"s_add_u32 m0, s{sReg}, {m0[1]}" if m0[0] == 's' else f"s_mov_b32 m0, {m0[1]}"]
    for i in range(4):
        o.append(f"s_add_u32 s{sT0}, s{sbase}, {(krow + 8*i)*1280 - 1024*i}")
        o.append(f"buffer_load_dwordx4 v{vWD}, {srd(rWO)}, s{sT0} offen offset:{1024*i} lds")
    return o
def o_loads(sbase, c, buf, OB=OB):
    o = []
    for mb in range(2):
        o.append(f"s_add_u32 s{sT0}, s{sbase}, {mb*262144 + c*2048}")
        for s_ in range(2):
            o.append(f"buffer_load_dwordx4 {v(OB+buf*16+(mb*2+s_)*4,4)}, v1, {srd(rWS)}, s{sT0} offen offset:{1024*s_}" + os.environ.get("OM", " sc1").replace("_", " "))
    return o
def f_reads(slot, fb):
    b = FB[0] + 16 * fb
    return [f"ds_read_b64_tr_b16 {v(b+(s_*2+w)*4+2*ee,2)}, v{vTR[w]} offset:{slot*4096+2048*s_+512*ee}" for s_ in range(2) for w in range(2) for ee in range(2)]
def o_mfmas(fb, buf, first=False, OB=OB):
    b = FB[0] + 16 * fb
    return [mf(ACC+16*(mb*2+w), b+(s_*2+w)*4, OB+buf*16+(mb*2+s_)*4, "0" if (first and s_ == 0) else None) for s_ in range(2) for mb in range(2) for w in range(2)]
polln = [0]
def poll():
    polln[0] += 1
    n = polln[0]
    return [f"s_mov_b32 s{sSpin}, 200000", f"L_poll{n}:",
            f"buffer_load_dword v6, v{vPOLL}, {srd(rWS)}, 0 offen sc1", f"s_sub_u32 s{sSpin}, s{sSpin}, 1", "s_waitcnt vmcnt(0)",
            f"v_cmp_ne_u32 vcc, s{sNonce}, v6", f"s_cbranch_vccz L_pd{n}", f"s_cmp_lg_u32 s{sSpin}, 0", f"s_cbranch_scc1 L_poll{n}", f"L_pd{n}:"]
def poll_addr(nh_mask, sHead0, rot=None):
    return [f"s_lshr_b32 s{sT0}, s{sOI}, 6", f"s_lshl_b32 s{sT1}, s{sHead0}, 7", f"s_add_u32 s{sT0}, s{sT0}, s{sT1}", f"s_add_u32 s{sT0}, s{sT0}, {FLAGB}",
            f"v_and_b32 v{vPOLL}, 1, v0", f"v_lshlrev_b32 v{vPOLL}, 12, v{vPOLL}", "v_lshrrev_b32 v6, 1, v0"] + ([f"v_add_u32 v6, s{rot}, v6"] if rot else []) + [f"v_and_b32 v6, {nh_mask}, v6",
            f"v_lshl_add_u32 v{vPOLL}, v6, 7, v{vPOLL}", f"v_add_u32 v{vPOLL}, s{sT0}, v{vPOLL}"]
def k0_of(w): return 1024 * (w >> 1) + 512 + 256 * (w & 1)
TR = env("TR", 3)
def tail_h0(dst, w=None):
    w = f"s{sWave}" if w is None else str(w)
    return [f"s_mul_i32 s{sT0}, s{sNt}, {TR}", f"s_add_u32 s{sT0}, s{sT0}, {w}", f"s_and_b32 s{sT0}, s{sT0}, 7",
            f"s_and_b32 s{dst}, s{sT0}, 6", f"s_add_u32 s{dst}, s{dst}, s{sT0}", f"s_lshl_b32 s{dst}, s{dst}, 1", f"s_add_u32 s{dst}, s{dst}, 4"]
def tail_bases():
    return tail_h0(sHc) + [f"s_mul_i32 s{sWb}, s{sHc}, {128*1280}", f"s_add_u32 s{sWb}, s{sWb}, s{sWOb}",
            f"s_lshl_b32 s{sXb}, s{sHc}, 13", f"s_add_u32 s{sXb}, s{sXb}, s{sOI}"] + poll_addr(1, sHc)
def tail_pre_reads():
    return f_reads(0, 0) + f_reads(1, 1)[:7] + ["s_waitcnt lgkmcnt(7)"] + f_reads(1, 1)[7:] + f_reads(2, 2)[:7] + ["s_waitcnt lgkmcnt(7)"] + f_reads(2, 2)[7:] + ["s_waitcnt lgkmcnt(0)"]
def tail_refill():
    return wo_dma(sWb, 160, ('s', 0)) + wo_dma(sWb, 192, ('s', 4096)) + wo_dma(sWb, 224, ('s', 8192))
def zero_acc(): return [f"v_mov_b32 v{ACC+i}, 0" for i in range(64)]

Q=8; O=40; S=[104,120]; P=[136,144]; KF=152; VF=184; NEGM=216; KST=232; VST=240; LS=[244,246]; TT=248
F=2; D=3; T0=4; T1=5
pro = []
e = pro.append
e("s_setprio %d" % env("PRIOC", 2))
e(f"s_mov_b32 s{sThr}, {fbits(LTHR)}"); e(f"s_mov_b32 s{sPass}, 0"); e(f"s_mov_b32 s{sHc}, s{sH}")
e("v_and_b32 v2, 31, v0"); e("v_lshrrev_b32 v3, 5, v0")
e("v_and_b32 v4, 15, v2"); e("v_xor_b32 v4, v4, v3"); e("v_lshlrev_b32 v4, 4, v4"); e("v_lshl_add_u32 v4, v2, 8, v4")
for s_ in range(8): e(f"v_xor_b32 v{KST+s_}, {32*s_}, v4")
e("v_lshrrev_b32 v2, 2, v0"); e("v_and_b32 v2, 3, v2")
e("v_lshrrev_b32 v4, 4, v0"); e("v_and_b32 v4, 1, v4"); e("v_lshlrev_b32 v4, 5, v4")
e("v_and_b32 v5, 1, v0"); e("v_lshl_add_u32 v4, v5, 4, v4"); e("v_and_b32 v5, 2, v0"); e("v_lshl_add_u32 v4, v5, 2, v4")
e("v_lshl_add_u32 v4, v2, 8, v4"); e("v_lshl_add_u32 v4, v2, 6, v4"); e("v_lshl_add_u32 v4, v3, 10, v4")
for w in range(4): e(f"v_xor_b32 v{VST+w}, {64*w}, v4")

PFD = env("PFD", 0); PFS = env("PFS", 64); PFA = env("PFA", 0); PFR = env("PFR", 1); PFM = os.environ.get("PFM", "")
rPF = rX; sIt = sKV; sPo = sKV + 1
if PFD:
    e(f"s_cmp_eq_u32 s{sWave}, 0")
    e(f"s_cselect_b32 s{rPF}, s{rK}, s{rV}"); e(f"s_cselect_b32 s{rPF+1}, s{rK+1}, s{rV+1}")
    e(f"s_cmp_lt_u32 s{sWave}, 2"); e(f"s_cselect_b32 s{rPF+2}, s{rK+2}, 0")
    e(f"s_lshl_b32 s{sPo}, s{sB}, 5"); e(f"s_add_u32 s{sPo}, s{sPo}, s{sH}"); e(f"s_lshl_b32 s{sPo}, s{sPo}, 18"); e(f"s_add_u32 s{sPo}, s{sPo}, {4*8192}")
    e(f"s_mov_b32 s{sSpin}, 8192"); e(f"s_mov_b32 s{sIt}, 4"); e(f"v_lshlrev_b32 v7, {int(math.log2(PFS))}, v0")
def pf_ops():
    if not PFD: return []
    o = [f"buffer_load_dword v6, v7, {srd(rPF)}, s{sPo} offen {PFM}"]
    if PFS == 64: o += [f"s_add_u32 s{sT1}, s{sPo}, 4096", f"buffer_load_dword v6, v7, {srd(rPF)}, s{sT1} offen {PFM}"]
    o += [f"s_add_u32 s{sIt}, s{sIt}, 1", f"s_cmp_eq_u32 s{sIt}, 32", f"s_cselect_b32 s{sT1}, {8192+15*262144}, s{sSpin}", f"s_add_u32 s{sPo}, s{sPo}, s{sT1}",
          f"s_cmp_ge_u32 s{sIt}, 64", f"s_cselect_b32 s{rPF+2}, 0, s{rPF+2}"]
    return o
def k_reads(slot): return [f"ds_read_b128 {v(KF+4*s_,4)}, v{KST+s_} offset:{KRING+8192*slot}" for s_ in range(8)]
def v_reads(slot, kb):
    return [f"ds_read_b64_tr_b16 {v(VF+(kb*4+w)*4+2*ee,2)}, v{VST+w} offset:{VRING+8192*slot+4096*kb+2048*ee}" for w in range(4) for ee in range(2)]
def qk_mfmas(par, c0): return [mf(S[par], KF+4*s_, Q+4*s_, c0 if s_ == 0 else None) for s_ in range(8)]
def pv_mfmas(par): return [mf(O+16*w, VF+(kb*4+w)*4, P[par]+4*kb) for kb in range(2) for w in range(4)]
def max_ops(sb):
    return [f"v_max3_f32 v{T0}, v{sb}, v{sb+1}, v{sb+2}", f"v_max3_f32 v{T1}, v{sb+3}, v{sb+4}, v{sb+5}",
            f"v_max3_f32 v{T0}, v{T0}, v{sb+6}, v{sb+7}", f"v_max3_f32 v{T1}, v{T1}, v{sb+8}, v{sb+9}",
            f"v_max3_f32 v{T0}, v{T0}, v{sb+10}, v{sb+11}", f"v_max3_f32 v{T1}, v{T1}, v{sb+12}, v{sb+13}",
            f"v_max3_f32 v{T0}, v{T0}, v{sb+14}, v{sb+15}", f"v_max_f32 v{T0}, v{T0}, v{T1}",
            f"v_mov_b32 v{T1}, v{T0}", "s_nop 1", f"v_permlane32_swap_b32 v{T0}, v{T1}", "s_nop 0", f"v_max_f32 v{D}, v{T0}, v{T1}"]
def sm_ops(sp, lold=None):
    sb = S[sp]; pb = P[sp]; ln = LS[sp]
    o = []
    for i in range(16 + 2):
        if i < 16: o.append(f"v_exp_f32 v{TT+(i&7)}, v{sb+i}")
        j = i - 2
        if 0 <= j < 16:
            if j < 2:
                o.append(f"v_mov_b32 v{ln+j}, v{TT+j}" if lold is None else f"v_add_f32 v{ln+j}, v{lold+j}, v{TT+j}")
            else:
                o.append(f"v_add_f32 v{ln+(j&1)}, v{ln+(j&1)}, v{TT+(j&7)}")
            if j & 1: o.append(f"v_cvt_pk_bf16_f32 v{pb+(j>>1)}, v{TT+((j-1)&7)}, v{TT+(j&7)}")
    return o
ool = []
site = [0]
def rare_block(n, par, qk):
    sp = 1 - par
    o = [f"L_rare{n}:"] + max_ops(S[sp]) + [f"v_max_f32 v{D}, 0, v{D}", f"v_exp_f32 v{F}, -v{D}"]
    o += [f"v_sub_f32 v{S[sp]+i}, v{S[sp]+i}, v{D}" for i in range(16)]
    o += [f"v_mul_f32 v{LS[par]+j}, v{LS[par]+j}, v{F}" for j in range(2)]
    o += sm_ops(sp, LS[par])
    if qk: o += [f"v_sub_f32 v{S[par]+i}, v{S[par]+i}, v{D}" for i in range(16)]
    o += [f"v_sub_f32 v{NEGM+i}, v{NEGM+i}, v{D}" for i in range(16)]
    o += [f"v_mul_f32 v{O+i}, v{O+i}, v{F}" for i in range(64)]
    o += [f"s_branch L_back{n}"]
    return o
def at_step(a, qk=True, extra=None):
    par = a & 1
    n = site[0]; site[0] += 1
    o = ["s_barrier"]
    mm = pv_mfmas(par) + (qk_mfmas(par, v(NEGM, 16)) if qk else [])
    kr = k_reads(a % 4) if qk else []
    vs = (a - 1) % 4
    gaps = {}
    if qk:
        gaps[-1] = kr[:2]
        spread(kr[2:], 0, 2, gaps)
        if env("PFSS", 1): spread(pf_ops(), 0, 1, gaps)
        sm = sm_ops(1 - par, LS[par])
        spread(sm, 2, 14, gaps)
        spread(v_reads(vs, 0), 4, 7, gaps)
        gaps[7].append("s_waitcnt lgkmcnt(8)")
        spread(v_reads(vs, 1), 8, 11, gaps)
    else:
        gaps[-1] = ["s_nop 5"]
        sm = sm_ops(1 - par, LS[par])
        spread(sm, 2, 7, gaps)
        spread(v_reads(vs, 0), 4, 6, gaps)
        gaps[7] = v_reads(vs, 1) + gaps[7]
    last = len(mm) - 1
    ln = LS[1 - par]
    chk = [f"v_max_f32 v{T0}, v{ln}, v{ln+1}", f"v_cmp_lt_f32 vcc, s{sThr}, v{T0}"]
    gaps.setdefault(last, []).extend(chk + (extra or []) + [f"s_cbranch_vccnz L_rare{n}", f"L_back{n}:"])
    ool.append(rare_block(n, par, qk))
    o += interleave(mm, gaps)
    o.append("s_waitcnt lgkmcnt(0)")
    return o
def at_step0():
    o = [f"s_lshl_b32 s{sT0}, s{sWave}, 13", f"s_add_u32 s{sT0}, s{sT0}, {GA}", f"s_mov_b32 s{sT1}, 2048", f"s_cmp_eq_u32 s{sWave}, 2",
         f"s_cselect_b32 s{sT0}, {4*REG+16384}, s{sT0}", f"s_cselect_b32 s{sT1}, {REG}, s{sT1}", f"v_add_u32 v{TT}, s{sT0}, v1"]
    o += [f"v_add_u32 v{TT+j+1}, s{sT1}, v{TT+j}" for j in range(3)] + ["s_barrier"]
    kr = k_reads(0)
    qr = [f"ds_read_b128 {v(Q+4*s_,4)}, v{TT+(s_>>1)} offset:{1024*(s_&1)}" for s_ in range(8)]
    for s_ in range(7): o += [qr[s_], kr[s_]]
    o += [qr[7], "s_waitcnt lgkmcnt(13)", kr[7]]
    mm = qk_mfmas(0, "0")
    gaps = {}
    for k in range(7): gaps[k] = [f"s_waitcnt lgkmcnt({max(0, 12-2*k)})"]
    zs = [f"v_mov_b32 v{O+i}, 0" for i in range(64)]
    spread(zs, 0, 7, gaps)
    for k in range(7): gaps[k] = gaps[k][1:] + gaps[k][:1]
    o += interleave(mm, gaps)
    return o
def at_step1(extra):
    o = ["s_barrier"] + k_reads(1) + v_reads(0, 0)[:6] + extra
    o += max_ops(S[0])
    o += [f"v_sub_f32 v{NEGM+i}, 0, v{D}" for i in range(16)]
    o += ["s_waitcnt lgkmcnt(6)", "s_nop 0"]
    mm = qk_mfmas(1, v(NEGM, 16))
    gaps = {}
    ops = [f"v_sub_f32 v{S[0]+i}, v{S[0]+i}, v{D}" for i in range(16)] + sm_ops(0, None)
    spread(ops, 0, 7, gaps)
    gaps[0] = v_reads(0, 0)[6:] + gaps[0]
    gaps[1] = v_reads(0, 1)[:4] + gaps[1]
    gaps[2] = v_reads(0, 1)[4:] + gaps[2]
    o += interleave(mm, gaps) + ["s_waitcnt lgkmcnt(0)"]
    return o
NLDS = 7 * REG + 18432
n_rd = [f"v_mov_b32 v7, {NLDS}", "ds_read_b32 v7, v7"]
n_get = [f"v_readfirstlane_b32 s{sNonce}, v7"]
def n_iss(r): return [f"buffer_load_dword v{r}, off, {srd(rDBG)}, 0 sc1"]
def n_fin(r):
    polln[0] += 1
    n = polln[0]
    return [f"s_mov_b32 s{sSpin}, 200000", f"L_n{n}:", f"v_readfirstlane_b32 s{sNonce}, v{r}", f"s_cmp_lg_u32 s{sNonce}, 0", f"s_cbranch_scc1 L_nd{n}",
            f"s_sub_u32 s{sSpin}, s{sSpin}, 1", f"s_cbranch_scc1 L_nd{n}"] + n_iss(r) + ["s_waitcnt vmcnt(0)", f"s_branch L_n{n}", f"L_nd{n}:"]
def at_last():
    L0 = LS[1]; L1 = LS[1] + 1
    o = ["s_barrier"] + n_rd + pv_mfmas(1)
    o += [f"v_add_f32 v{L0}, v{L0}, v{L1}", f"v_mov_b32 v{L1}, v{L0}", "s_nop 1", f"v_permlane32_swap_b32 v{L0}, v{L1}", "s_nop 0",
          f"v_add_f32 v{L0}, v{L0}, v{L1}", f"v_rcp_f32 v{L0}, v{L0}"]
    o += [f"s_mul_i32 s{sOb}, s{sBr}, 24", f"s_mul_i32 s{sOb2}, s{sB}, 3", f"s_add_u32 s{sOb}, s{sOb}, s{sOb2}", f"s_add_u32 s{sOb}, s{sOb}, s{sWave}",
          f"s_lshl_b32 s{sOb}, s{sOb}, 5", f"s_add_u32 s{sOb}, s{sOb}, s{sHc}", f"s_lshl_b32 s{sOb}, s{sOb}, 13", f"s_add_u32 s{sOb2}, s{sOb}, 4096", "s_nop 1"]
    for s_ in range(8):
        src = O + 16 * (s_ >> 1) + 8 * (s_ & 1)
        for t in range(8): o.append(f"v_mul_f32 v{src+t}, v{src+t}, v{L0}")
        for t in range(4): o.append(f"v_cvt_pk_bf16_f32 v{VF+4*s_+t}, v{src+2*t}, v{src+2*t+1}")
        o.append(f"buffer_store_dwordx4 {v(VF+4*s_,4)}, v1, {srd(rWS)}, s{sOb if s_<4 else sOb2} offen offset:{1024*(s_&3)}" + os.environ.get("SM", " sc1").replace("_", " "))
    return o + ["s_waitcnt lgkmcnt(0)"]
def flag_store():
    return ["s_waitcnt vmcnt(0)"] + [f"s_lshr_b32 s{sT0}, s{sOb}, 6", f"s_add_u32 s{sT0}, s{sT0}, {FLAGB}", f"v_mov_b32 v{TT}, s{sNonce}", f"v_mov_b32 v{TT+1}, 0",
            "s_mov_b64 exec, 1", f"buffer_store_dword v{TT}, v{TT+1}, {srd(rWS)}, s{sT0} offen sc1", "s_mov_b64 exec, -1"]
def bar_loop(n, lab):
    return [f"s_mov_b32 s{sCnt}, {n}", f"{lab}:", "s_barrier", f"s_sub_u32 s{sCnt}, s{sCnt}, 1", f"s_cmp_lg_u32 s{sCnt}, 0", f"s_cbranch_scc1 {lab}"]

vXD = [8, 9]; vWq = 10
XS = [GA + 81920, KRING + 16384, VRING + 16384]
qset = []
e = qset.append
e(f"s_mov_b32 s12, s{sWave}")
e("v_lshrrev_b32 v6, 4, v0"); e("v_and_b32 v7, 7, v0"); e("v_xor_b32 v7, v7, v6"); e("v_lshlrev_b32 v7, 4, v7")
e(f"v_lshrrev_b32 v{vXD[0]}, 3, v0"); e(f"v_mul_u32_u24 v{vXD[0]}, 1280, v{vXD[0]}"); e(f"v_add_u32 v{vXD[0]}, v{vXD[0]}, v7")
e("s_and_b32 s13, s12, 1"); e("s_lshl_b32 s13, s13, 6"); e(f"v_xor_b32 v{vXD[0]}, s13, v{vXD[0]}"); e(f"v_xor_b32 v{vXD[1]}, 64, v{vXD[0]}")
e(f"s_mul_i32 s{sXb}, s{sB}, 122880"); e("s_mul_i32 s13, s12, 30720"); e(f"s_add_u32 s{sXb}, s{sXb}, s13")
e("s_mul_i32 s15, s12, 3072")
e("v_lshlrev_b32 v7, 2, v6"); e(f"v_and_b32 v{vWq}, 15, v0"); e(f"v_xor_b32 v7, v7, v{vWq}"); e("v_lshlrev_b32 v7, 4, v7"); e(f"v_lshl_add_u32 v{vWq}, v6, 13, v7")
e(f"s_lshl_b32 s{sWb}, s{sH}, 8"); e("s_lshl_b32 s13, s12, 16"); e(f"s_add_u32 s{sWb}, s{sWb}, s13")
e("s_lshl_b32 s14, s12, 11")
vm = VM()
def w_issue(t):
    sl = GA + ((t + 2) % 5) * 16384
    o = []
    for hd in range(2):
        o += [f"s_add_u32 m0, s14, {sl + 8192*hd}", f"s_add_u32 s{sT0}, s{sWb}, {t*262144 + 1024*hd}", f"s_add_u32 s{sT1}, s{sWb}, {t*262144 + 1024*hd + 32768 - 1024}",
              f"buffer_load_dwordx4 v{vWq}, {srd(rW)}, s{sT0} offen lds", f"buffer_load_dwordx4 v{vWq}, {srd(rW)}, s{sT1} offen offset:1024 lds"]
    vm.issue(("w", t), 4)
    return o
def x_issue(j):
    o = [f"s_add_u32 m0, s15, {XS[j % 3]}"]
    for i in range(3):
        o += [f"s_add_u32 s{sT0}, s{sXb}, {j*128 + i*(10240 - 1024)}", f"buffer_load_dwordx4 v{vXD[i&1]}, {srd(rX)}, s{sT0} offen offset:{1024*i} lds"]
    vm.issue(("x", j), 3)
    return o
def q_need(t):
    tags = [x for x in (("w", t), ("x", t // 2)) if vm.has(x)]
    if not tags: return []
    last = max(tags, key=lambda tg: max(i for i, x in enumerate(vm.q) if x == tg))
    return [vm.wait(last)]
def q_pro(): return x_issue(0) + w_issue(0) + w_issue(1) + x_issue(1) + w_issue(2) + w_issue(3)
def q_iss(t):
    o = []
    if t % 2 == 0 and t // 2 + 2 < 10: o += x_issue(t // 2 + 2)
    if t + 4 < NQ: o += w_issue(t + 4)
    return o
cq = qset + q_pro() + pro + q_need(0)
for t in range(NQ):
    cq += ["s_barrier"] + q_iss(t) + (q_need(t + 1) if t + 1 < NQ else [])
emit(cq)
emit(stamp(1))
A.label("L_head")
a0 = at_step0(); a1 = at_step1([])
emit(a0); emit(a1)
I(f"s_cmp_eq_u32 s{sPass}, 0"); I("s_cbranch_scc1 L_noflag")
emit(n_get + flag_store())
if env("RB", 0): emit([f"v_lshlrev_b32 v6, 7, v0", f"buffer_load_dword v6, v6, {srd(rWS)}, s{sOb} offen sc1"])
if env("RB", 0) == 2: emit([f"v_lshlrev_b32 v7, 7, v0", f"buffer_load_dword v7, v7, {srd(rWS)}, s{sOb} offen offset:64 sc1"])
A.label("L_noflag")
I(f"s_mov_b32 s{sCnt}, 8"); I("s_branch L_a2")
A.label("L_aloop")
st4 = [at_step(4), at_step(5), at_step(6)]
st4.append(at_step(7, extra=[f"s_sub_u32 s{sCnt}, s{sCnt}, 1"]))
emit(st4[0]); emit(st4[1]); A.label("L_a2"); emit(st4[2]); emit(st4[3])
I(f"s_cmp_lg_u32 s{sCnt}, 0"); I("s_cbranch_scc1 L_aloop")
a32 = at_step(32, qk=False)
a33 = at_last()
emit(a32); emit(a33)
if ST:
    I(f"s_cmp_lg_u32 s{sPass}, 0"); I("s_cbranch_scc1 L_stx"); emit(stamp(2)); A.label("L_stx")
I(f"s_add_u32 s{sHc}, s{sHc}, 4")
I(f"s_add_u32 s{sPass}, s{sPass}, 1"); I(f"s_cmp_lt_u32 s{sPass}, 2"); I("s_cbranch_scc1 L_head")
import re as _re
def ren67(l): return [_re.sub(r"\bv7\b", "v251", _re.sub(r"\bv6\b", "v250", x)) for x in l]
SAMP = f"buffer_load_dword v6, v{vPOLL}, {srd(rWS)}, 0 offen sc1"
CHK = f"v_cmp_ne_u32 vcc, s{sNonce}, v6"
EC = env("EC", 0); EG = env("EG", 0); NE = env("NE", 5)
if EC:
    ct = [f"s_cmp_ge_u32 s{sI}, 30", "s_cbranch_scc1 L_cfin"] + ren67(tail_bases() + [SAMP]) + ren67(tail_addr_setup())[:0] + zero_acc()
    ct += [x.replace("v6", "v251").replace("v7", "v253") for x in tail_addr_setup()]
    ct += flag_store() + stamp(3) + ren67([CHK]) + ["s_cbranch_vccz L_early", "s_branch L_late"]
else:
    ct = [f"s_cmp_ge_u32 s{sI}, 30", "s_cbranch_scc1 L_cfin"] + ren67(tail_addr_setup() + tail_bases()) + zero_acc()
    if env("FB", 0): ct += flag_store() + stamp(3) + ["s_barrier"] + tail_pre_reads() + tail_refill() + ["s_branch L_tail"]
    else: ct += ["s_barrier"] + tail_pre_reads() + flag_store() + stamp(3) + tail_refill() + ["s_branch L_tail"]
emit(ct)
A.label("L_cfin"); emit(flag_store()); emit(stamp(3)); I("s_endpgm")
for blk in ool: emit(blk)
errs = check_hazards(pro + a0 + a1 + st4[2] + st4[3] + st4[0] + st4[1] + st4[2] + st4[3] + a32 + a33 + a0 + a1 + flag_store() + st4[2], "C")
errs += check_hazards(a32 + a33 + ct, "Ct")
def with_ool(step):
    t = []
    for x in step:
        t.append(x)
        if x.startswith("s_cbranch") and "L_rare" in x:
            lab = x.split()[1] + ":"
            t += [b for b in ool if b[0] == lab][0]
    return t
errs += check_hazards(a1 + with_ool(st4[2]) + with_ool(st4[3]) + with_ool(st4[0]) + with_ool(st4[1]) + with_ool(st4[2]) + with_ool(st4[3]) + with_ool(a32) + a33, "Crare")

QACC = 8; XF = [104, 128]; WF = [152, 168]; QB = 184
XRL = 208; XRH = 212; WR = [216, 217]
g = []
e = g.append
e("L_g:")
e("s_setprio %d" % env("PRIOG", 0))
e(f"s_sub_u32 s12, s{sWave}, 4")
e("s_lshl_b32 s14, s12, 11")
gpro2 = []
e = gpro2.append
e("v_and_b32 v6, 31, v0"); e("v_lshrrev_b32 v7, 5, v0"); e("v_lshrrev_b32 v8, 1, v6"); e("v_and_b32 v8, 7, v8"); e("v_xor_b32 v8, v8, v7"); e("v_lshlrev_b32 v8, 4, v8")
e(f"v_lshl_add_u32 v{XRL}, v6, 7, v8")
for c_ in range(1, 4): e(f"v_xor_b32 v{XRL+c_}, {32*c_}, v{XRL}")
for c_ in range(4): e(f"v_add_u32 v{XRH+c_}, {XS[0]}, v{XRL+c_}")
e("v_lshrrev_b32 v6, 2, v0"); e("v_and_b32 v6, 3, v6")
e("v_lshrrev_b32 v8, 4, v0"); e("v_and_b32 v8, 1, v8"); e("v_lshlrev_b32 v8, 5, v8")
e("v_and_b32 v5, 1, v0"); e("v_lshl_add_u32 v8, v5, 4, v8"); e("v_and_b32 v5, 2, v0"); e("v_lshl_add_u32 v8, v5, 2, v8")
e("v_lshl_add_u32 v8, v6, 8, v8"); e("v_lshl_add_u32 v8, v6, 6, v8"); e("v_lshl_add_u32 v8, v7, 11, v8")
e("s_lshl_b32 s13, s12, 6"); e("v_xor_b32 v8, s13, v8")
e(f"v_add_u32 v{WR[0]}, {GA}, v8"); e(f"v_add_u32 v{WR[1]}, 49152, v{WR[0]}")
e(f"s_mov_b32 s{sPass}, 0")
def q_reads(t):
    sl = (t + 2) % 5; hi = sl // 3; so = (sl % 3) * 16384; par = t & 1
    xs = (t // 2) % 3
    o = []
    for s_ in range(2):
        o += [f"ds_read_b64_tr_b16 {v(WF[par]+s_*4+2*ee,2)}, v{WR[hi]} offset:{so+4096*s_+1024*ee}" for ee in range(2)]
        o += [f"ds_read_b128 {v(XF[par]+(s_*3+qb)*4,4)}, v{(XRH if xs == 0 else XRL)+2*par+s_} offset:{(0 if xs == 0 else XS[xs])+4096*qb}" for qb in range(3)]
    for s_ in range(2):
        o += [f"ds_read_b64_tr_b16 {v(WF[par]+8+s_*4+2*ee,2)}, v{WR[hi]} offset:{so+8192+4096*s_+1024*ee}" for ee in range(2)]
    return o
def q_mfmas(t):
    par = t & 1
    return [mf(QACC+48*hd+16*qb, WF[par]+8*hd+s_*4, XF[par]+(s_*3+qb)*4, "0" if (t == 0 and s_ == 0) else None) for hd in range(2) for s_ in range(2) for qb in range(3)]
def q_out(hd):
    o = []
    for qb in range(3):
        for hf in range(2):
            src = QACC + 48 * hd + 16 * qb + 8 * hf
            o += [f"v_mul_f32 v{src+t}, s{sT0}, v{src+t}" for t in range(8)]
            dst = QB + (qb * 2 + hf) * 4
            o += [f"v_cvt_pk_bf16_f32 v{dst+t}, v{src+2*t}, v{src+2*t+1}" for t in range(4)]
            o.append(f"ds_write_b128 v{6 if qb < 2 else 7}, {v(dst,4)} offset:{qb*8192 + hf*1024}")
    return o
CASS = -1
CAS = ["s_mov_b64 exec, 1", f"buffer_atomic_cmpswap v[230:231], off, {srd(rDBG)}, 0 sc1", "s_mov_b64 exec, -1"]
qb_ = []
QST = {0: 1, 5: 2, 10: 3, 15: 7}
for t in range(NQ):
    qb_.append("s_barrier")
    if t in QST: qb_ += stampq(QST[t], True)
    if t == CASS: qb_ += ["s_cmp_lg_u32 s15, 3", "s_cbranch_scc1 L_nocas2"] + CAS + ["L_nocas2:"]
    rd = q_reads(t)
    if t == 0:
        qb_ += rd
    else:
        gaps = {-1: rd[:2]}
        spread(rd[2:], 0, 5, gaps)
        qb_ += interleave(q_mfmas(t - 1), gaps)
    qb_.append("s_waitcnt lgkmcnt(0)")
gaps = {5: [f"s_mov_b32 s{sT0}, {fbits(CSC)}", f"s_add_u32 s{sT1}, s14, {GA}", f"v_add_u32 v6, s{sT1}, v1", f"v_add_u32 v7, s{sReg}, v1"], 6: ["s_nop 5"]}
spread(q_out(0), 7, 11, gaps)
qb_ += interleave(q_mfmas(NQ - 1), gaps)
qb_ += ["s_waitcnt vmcnt(0) lgkmcnt(0)", "s_barrier", "s_barrier"] + q_out(1) + ["s_waitcnt lgkmcnt(0)"]
if flag("qnl"): qb_ = [x for x in qb_ if not (x.startswith("buffer_load") and x.endswith("lds"))]
if flag("qnr"): qb_ = [x for x in qb_ if not x.startswith("ds_read")]
if flag("qnm"): qb_ = [x for x in qb_ if not x.startswith("v_mfma")]
emit(g)
PFG = env("PFG", 64)
I("s_mov_b32 s15, s12"); I(f"s_cmp_lg_u32 s15, 3"); I("s_cbranch_scc1 L_nocas")
TL = env("TL", 47)
if TL & 16:
    I(f"v_mul_u32_u24 v2, {64*1280}, v0"); I(f"buffer_load_dword v220, v2, {srd(rWO)}, s{sWOb} offen")
I("s_mov_b64 exec, 1"); I("v_mov_b32 v231, 0")
if TL & 1:
    I("s_load_dword s18, s[38:39], 128"); I(f"buffer_load_dword v221, off, {srd(rDBG)}, 0 offset:128")
I(f"s_mul_i32 s16, s{sBr}, 24"); I(f"s_mul_i32 s17, s{sB}, 3"); I("s_add_u32 s16, s16, s17"); I("s_lshl_b32 s16, s16, 5"); I(f"s_add_u32 s16, s16, s{sH}"); I("s_lshl_b32 s16, s16, 13")
I("s_lshr_b32 s17, s16, 6"); I(f"s_add_u32 s17, s17, {FLAGB}")
if TL & 2: I(f"buffer_store_dword v231, off, {srd(rWS)}, s16 sc1")
if TL & 4: I(f"buffer_store_dword v231, off, {srd(rWS)}, s17 sc1")
if TL & 8:
    I(f"s_min_u32 s16, s{sMt}, 11"); I("s_mul_i32 s16, s16, 163840"); I(f"s_mul_i32 s17, s{sBr}, 1280"); I("s_add_u32 s16, s16, s17"); I(f"s_add_u32 s16, s16, s{sWOb}")
    I(f"buffer_load_dword v222, off, {srd(rOUT)}, s16")
if TL & 32:
    I(f"s_lshl_b32 s16, s{sB}, 5"); I(f"s_add_u32 s16, s16, s{sH}"); I("s_lshl_b32 s16, s16, 18"); I(f"s_add_u32 s17, s16, {4 << 18}")
    for j_, (r_, so) in enumerate(((rK, 16), (rV, 16), (rK, 17), (rV, 17))): I(f"buffer_load_dword v{223+j_}, off, {srd(r_)}, s{so}")
I("s_mov_b64 exec, -1"); I("s_waitcnt lgkmcnt(0)")
I(f"s_cmp_ge_u32 s2, {env('NCAS', 256)}"); I("s_cbranch_scc1 L_pfd")
I("s_memrealtime s[16:17]"); I("s_waitcnt lgkmcnt(0)"); I("s_or_b32 s16, s16, 1"); I("v_mov_b32 v230, s16")
if CASS < 0: emit(CAS)
I("s_branch L_pfd")
A.label("L_nocas")
if PFG and not env('PFO', 0):
    sh = {16: 4, 64: 6, 128: 7}[PFG]
    ld = "buffer_load_dwordx4 {}" if PFG == 16 else "buffer_load_dword {}"
    dst = (lambda j: v(220 + 4 * j, 4)) if PFG == 16 else (lambda j: v(220 + j))
    I(f"s_cmp_eq_u32 s15, 1"); I("s_cbranch_scc1 L_pfx")

    lpr = 256 // PFG
    rpi = 64 // lpr
    I(f"s_mul_i32 s16, s{sB}, {80*8192}"); I(f"s_lshl_b32 s17, s{sH}, 8"); I("s_add_u32 s16, s16, s17"); I(f"s_lshl_b32 s17, s15, 9"); I("s_add_u32 s16, s16, s17")
    I(f"v_lshrrev_b32 v2, {int(math.log2(lpr))}, v0"); I("v_lshlrev_b32 v2, 13, v2"); I(f"v_and_b32 v3, {lpr-1}, v0"); I(f"v_lshl_add_u32 v2, v3, {sh}, v2")
    for j in range((80 + rpi - 1) // rpi):
        I(ld.format(f"{dst(j)}, v2, {srd(rW)}, s16 offen")); I(f"s_add_u32 s16, s16, {rpi*8192}")
    I("s_branch L_pfd")
    A.label("L_pfx")
    I(f"s_mul_i32 s16, s{sB}, 122880"); I(f"s_and_b32 s17, s{sI}, 3"); I("s_mul_i32 s17, s17, 30720"); I("s_add_u32 s16, s16, s17")
    I(f"v_lshlrev_b32 v2, {sh}, v0")
    for j in range((30720 + 64 * PFG - 1) // (64 * PFG)):
        I(ld.format(f"{dst(j)}, v2, {srd(rX)}, s16 offen")); I(f"s_add_u32 s16, s16, {64*PFG}")
    A.label("L_pfd")
emit(gpro2)
emit(qb_)
G0 = 2
A.label("L_go")
I(f"s_cmp_ge_u32 s{sI}, 30"); I("s_cbranch_scc1 L_end")
emit(tail_addr_setup())
go = [f"s_mul_i32 s{sWb}, s12, {1024*1280}", f"s_add_u32 s{sWb}, s{sWb}, s{sWOb}", f"s_lshl_b32 s{sXb}, s12, 16", f"s_add_u32 s{sXb}, s{sXb}, s{sOI}",
      f"s_lshl_b32 s{sHc}, s12, 3"]
sRot = 24; sOh = 16; sWh = 20; RT = env("RT", 0)
go += [f"s_mul_i32 s{sRot}, s{sMt}, {env('RM', 0)}", f"s_mul_i32 s{sT0}, s{sNt}, {env('RN', 1)}", f"s_add_u32 s{sRot}, s{sRot}, s{sT0}"]
for hd in range(4):
    go += [f"s_add_u32 s{sT0}, s{sRot}, {hd}", f"s_and_b32 s{sT0}, s{sT0}, 3", f"s_lshl_b32 s{sOh+hd}, s{sT0}, {11 if RT else 13}", f"s_add_u32 s{sOh+hd}, s{sOh+hd}, s{sXb}",
           f"s_mul_i32 s{sWh+hd}, s{sT0}, {(32 if RT else 128)*1280}", f"s_add_u32 s{sWh+hd}, s{sWh+hd}, s{sWb}"]
go += poll_addr(3, sHc, None if RT else sRot)
RS = env("RS", 0); sOs = 26; sWs = 30; sTb = 25
if RS:
    go += [f"s_mul_i32 s{sTb}, s{sMt}, {RS}"]
    for k_ in range(4):
        go += [f"s_add_u32 s{sT0}, s{sTb}, {k_}", f"s_and_b32 s{sT0}, s{sT0}, 3", f"s_lshl_b32 s{sOs+k_}, s{sT0}, 11", f"s_mul_i32 s{sWs+k_}, s{sT0}, {32*1280}"]
go += tail_h0(sOb) + [f"s_mul_i32 s{sOb}, s{sOb}, {128*1280}", f"s_add_u32 s{sOb}, s{sOb}, s{sWOb}"]
PS = env("PS", 3); LA = env("LA", 4); PL = env("PL", 2); R2 = env("R2", 28); OBG = 184; NSET = 7
R2L = eval(os.environ.get("R2L", "[34,35]"))
vm = VM()
seq = [("W", c) for c in range(16)] + [("T", c) for c in (0, 1, 2, 3, 5, 6, 7)]
def wo_issue(ch, slot):
    vm.issue(ch, 4)
    if ch[0] == "W" and RS: return [f"s_add_u32 s{sTb}, s{sWh + ch[1] // 4}, s{sWs + ch[1] % 4}"] + wo_dma(sTb, 0, ('s', slot * 4096))
    if ch[0] == "W" and RT: return wo_dma(sWh + ch[1] % 4, 128 * (ch[1] // 4), ('s', slot * 4096))
    if ch[0] == "W": return wo_dma(sWh + ch[1] // 4, 32 * (ch[1] % 4), ('s', slot * 4096))
    return wo_dma(sOb, 32 * ch[1], ('s', slot * 4096))
w_iss = {}; w_rd = {}; o_iss = {}; mm_done = {}; fl_iss = {}; fl_ok = set()
nw = 0; nr = 0; no = 0; nm = 0; t4 = False
log = []
WSP = env('WSP', 99)
for S_ in range(G0, 2 * NA):
    go.append("s_barrier")
    a2 = S_ - NA
    body = []; lg = []
    if S_ == NA - 3: go += n_rd
    if S_ == NA - 2: go += n_get
    do_m = nm < 16 and nm in o_iss and o_iss[nm] <= S_ - LA and nm in w_rd
    do_r = nr < 19 and nr in w_iss and w_iss[nr] <= S_ - (LA if nr < 16 else env("LAT", 2)) and (nr < NSET or (nr - NSET) in mm_done or (do_m and nm == nr - NSET))
    if do_m and vm.has(("o", nm)): go.append(vm.wait(("o", nm)))
    if do_r and vm.has(seq[nr]): go.append(vm.wait(seq[nr]))
    rd = f_reads(nr % 4, (nr + 5) % NSET) if do_r else []
    early = do_r and not (do_m and nm == nr - NSET)
    if do_m:
        gaps = {}
        if early: spread(rd, -1, 2, gaps)
        go += interleave(o_mfmas((nm + 5) % NSET, nm % 4, first=(nm == 0), OB=OBG), gaps)
        if not early: go += rd
        mm_done[nm] = S_; lg.append(f"M{nm}"); nm += 1
    else:
        go += rd
    if do_r: w_rd[nr] = S_; lg.append(f"r{nr}"); nr += 1
    go.append("s_waitcnt lgkmcnt(0)")
    for _ in range(env("RPS", 1) - 1):
        if 16 <= nr < 19 and nr in w_iss and w_iss[nr] <= S_ - env("LAT", 2) and (nr - NSET) in mm_done:
            if vm.has(seq[nr]): go.append(vm.wait(seq[nr]))
            go += f_reads(nr % 4, (nr + 5) % NSET) + ["s_waitcnt lgkmcnt(0)"]
            w_rd[nr] = S_; lg.append(f"r{nr}"); nr += 1
    rate = 2 if (a2 >= R2 or S_ in R2L) else 1
    TS = env("TS", 63)
    if TS and S_ >= TS: rate = env("TRATE", 2)
    RL = eval(os.environ.get("RL", "{5:2,13:2,21:3,37:4,44:4,45:0,46:0,47:0,41:0,42:0,43:0,51:4,48:2,49:2,50:1,52:0,53:0,54:0,58:4,55:1,56:0,57:0}"))
    if S_ in RL: rate = RL[S_]
    if S_ in eval(os.environ.get("SKIP", "[]")): rate = 0
    for _ in range(rate):
        can_w = nw < len(seq) and (nw < 4 or (nw - 4) in w_rd) and (a2 >= 0 or S_ % WSP == WSP - 1 or S_ in R2L or S_ in RL) and (nw < 16 or S_ >= TS) and (nw < env("W7N", 7) or S_ >= env("W7S", 34))
        can_o = no < 16 and a2 >= PS and (no < 4 or (no - 4) in mm_done) and (no // 4 in fl_ok or (no // 4 in fl_iss and fl_iss[no // 4] <= S_ - PL))
        if can_w and (not can_o or (nw < 16 and nw <= no + 2)):
            go += wo_issue(seq[nw], nw % 4); w_iss[nw] = S_; lg.append("w%s%d" % seq[nw]); nw += 1
        elif can_o:
            hd = no // 4
            if hd not in fl_ok:
                if vm.has(("f", hd)): go.append(vm.wait(("f", hd)))
                polln[0] += 1; n_ = polln[0]
                go += [f"s_mov_b32 s{sSpin}, 200000", f"L_poll{n_}:", f"v_cmp_ne_u32 vcc, s{sNonce}, v6", f"s_sub_u32 s{sSpin}, s{sSpin}, 1", f"s_cbranch_scc1 L_pd{n_}",
                       f"s_and_b32 s{sT0}, vcc_lo, {3 << (2 * hd)}", f"s_cbranch_scc0 L_pd{n_}",
                       f"buffer_load_dword v6, v{vPOLL}, {srd(rWS)}, 0 offen sc1", "s_waitcnt vmcnt(0)", f"s_branch L_poll{n_}", f"L_pd{n_}:"]
                fl_ok.add(hd); lg.append(f"P{hd}")
            go += ([f"s_add_u32 s{sTb}, s{sOh + no // 4}, s{sOs + no % 4}"] + o_loads(sTb, 0, no % 4, OB=OBG) if RS else o_loads(sOh + no % 4, 4 * (no // 4), no % 4, OB=OBG) if RT else o_loads(sOh + no // 4, no % 4, no % 4, OB=OBG)); vm.issue(("o", no), 4); o_iss[no] = S_; lg.append(f"o{no}"); no += 1
        elif not t4 and a2 >= env("T4S", 1):
            go += wo_issue(("T", 4), 4); t4 = True; lg.append("wT4")
    hd = len(fl_iss)
    FS = eval(os.environ.get("FS", "{}"))
    if hd < 4 and FS.get(hd, 0) < 0 and len(fl_ok) == hd: fl_iss[hd] = S_ - PL
    elif hd < 4 and a2 >= PS - PL and len(fl_ok) == hd and no >= 4 * hd - PL and S_ >= FS.get(hd, 0):
        go.append(f"buffer_load_dword v6, v{vPOLL}, {srd(rWS)}, 0 offen sc1"); vm.issue(("f", hd)); fl_iss[hd] = S_; lg.append(f"f{hd}")
    if EG and S_ == 2 * NA - 2:
        assert nm == 16 and no == 16 and nw >= 16 and len(fl_ok) == 4
        go += tail_bases() + [SAMP]; vm.issue("samp"); lg.append("samp")
    assert len(vm.q) <= 63
    log.append(f"{S_}:" + ",".join(lg))
if flag("log"): print(" ".join(log))
assert nm == 16 and nr == 19 and nw == len(seq) and t4, (nm, nr, nw, t4)
if EG:
    go += ([vm.wait("samp")] if vm.has("samp") else []) + [CHK, "s_cbranch_vccz L_gearly"]
    for _ in range(env("GSP", 1)): go += [SAMP, "s_waitcnt vmcnt(0)", CHK, "s_cbranch_vccz L_gearly"]
else:
    go += tail_bases()
DUM = f"buffer_load_dword v7, v255, {srd(rDBG)}, 0 offen"
if flag("nowo") or flag("noo"): go = ["v_mov_b32 v255, 0x1000"] + go
if flag("nowo"): go = [DUM if (x.startswith("buffer_load") and srd(rWO) in x) else x for x in go]
if flag("noo"): go = [DUM if (x.startswith("buffer_load_dwordx4") and srd(rWS) in x) else x for x in go]
if flag("onosc"): go = [x.replace(" sc1", "") if x.startswith("buffer_load_dwordx4") else x for x in go]
if flag("ofake"): go = [x.replace(srd(rWS), srd(rK)) if x.startswith("buffer_load_dwordx4") else x for x in go]
if flag("wofake"): go = [x.replace(f"dwordx4 v{vWD},", "dwordx4 v1,") for x in go]
if flag("nord"): go = [x for x in go if not x.startswith("ds_read")]
if flag("nomm"): go = [x for x in go if not x.startswith("v_mfma")]
go += ["s_barrier", "s_branch L_tail"]
if EG:
    go += ["L_gearly:"]
    for c in range(8): go += o_loads(sXb, c, c)
    go += ["s_barrier"] + stamp(4) + ["s_branch L_tail2"]
emit(go)
errs += check_hazards(g + gpro2 + qb_, "G") + check_hazards(cq, "CQ")
errs += check_hazards(tail_addr_setup() + go, "Go")

A.label("L_ld")
I("s_setprio 3")
vm = VM()
emit(qset); emit(q_pro())
for p in range(2):
    I(f"s_lshl_b32 s{sKV+p}, s{sB}, 5"); I(f"s_add_u32 s{sKV+p}, s{sKV+p}, s{sH}")
    if p: I(f"s_add_u32 s{sKV+p}, s{sKV+p}, 4")
    I(f"s_lshl_b32 s{sKV+p}, s{sKV+p}, 18")
I("v_lshrrev_b32 v6, 4, v0")
I("v_and_b32 v7, 15, v0"); I("v_xor_b32 v7, v7, v6"); I("v_lshlrev_b32 v7, 4, v7"); I("v_lshl_add_u32 v248, v6, 8, v7")
for j in range(1, 4): I(f"v_xor_b32 v{248+j}, {64*j}, v248")
I("v_lshlrev_b32 v7, 2, v6"); I("v_and_b32 v5, 15, v0"); I("v_xor_b32 v7, v7, v5"); I("v_lshlrev_b32 v7, 4, v7"); I("v_lshl_add_u32 v252, v6, 8, v7")
I("v_mov_b32 v253, 0")
KR = env("KR", 0)
I(f"s_mul_i32 s25, s{sI}, {KR}"); I("s_and_b32 s26, s2, 7"); I(f"s_mul_i32 s26, s26, {env('KX', 4)}"); I("s_add_u32 s25, s25, s26"); I("s_and_b32 s25, s25, 31"); I("s_lshl_b32 s25, s25, 13")
for r_ in range(4): emit(tail_h0(20 + r_, r_) + [f"s_mul_i32 s{20+r_}, s{20+r_}, {128*1280}", f"s_add_u32 s{20+r_}, s{20+r_}, s{sWOb}"])
emit(tail_addr_setup())
if env("TW", 0):
    for r_ in (rK, rV): I(f"buffer_load_dword v247, v253, {srd(r_)}, s{sKV} offen"); vm.issue("tw")
def kv_issue(kind, it):
    p, t = divmod(it, 32)
    base = (KRING if kind == "K" else VRING) + (t % 4) * 8192
    o = []
    for half in range(2):
        if KR:
            if half == 0: o += [f"s_add_u32 s{sT0}, s25, {t*8192}", f"s_and_b32 s{sT0}, s{sT0}, {0x3ffff}", f"s_mov_b32 m0, {base}", f"s_add_u32 s{sT0}, s{sT0}, s{sKV+p}"]
            else: o += [f"s_mov_b32 m0, {base + 4096}", f"s_add_u32 s{sT0}, s{sT0}, 4096"]
        else:
            o += [f"s_mov_b32 m0, {base + 4096*half}", f"s_add_u32 s{sT0}, s{sKV+p}, {t*8192 + 4096*half}"]
        for i in range(4):
            vo = 248 + i if kind == "K" else 252
            o.append(f"buffer_load_dwordx4 v{vo}, {srd(rK if kind=='K' else rV)}, s{sT0} offen offset:{1024*i} nt lds")
    vm.issue((kind, it), 8)
    if flag("noload"): return []
    return o
def use_step(kind, it):
    p, t = divmod(it, 32)
    return NQ + NA * p + t + (0 if kind == "K" else 1)
NS = NQ + 2 * NA
init = eval(os.environ.get("KVINIT", "[16,16,16,17,17,18,18,19]"))
order = [("K",0),("V",0),("K",1),("V",1),("K",2),("V",2),("K",3),("V",3)]
sched = {}
assert init[4] >= 16 and init[6] >= 16 and init[5] >= 18 and init[7] >= 18
for st_, it in zip(init, order): sched.setdefault(st_, []).append(it)
WD = env("WD", 4)
for it in range(4, 64):
    for kind in "KV": sched.setdefault(use_step(kind, it - WD) + 1 if it >= WD else 19, []).append((kind, it))
def free_step(addr):
    if addr < VRING: return use_step("K", 60 + addr // 8192) + 1
    if addr < GA: return use_step("V", 60 + (addr - VRING) // 8192) + 1
    return NQ + NA + env("LW", 30)
for r in range(4):
    for c in range(5):
        ad = r * REG + c * 4096
        sched.setdefault(free_step(ad), []).append(("W", r, c))
lastkv = max(s_ for s_, l in sched.items() if any(x[0] != "W" for x in l))
CAP = env("CAP", 63)
def do_issue(st_):
    for it in sched.get(st_, []):
        n = 4 if it[0] == "W" else 8
        if len(vm.q) + n > CAP:
            I(f"s_waitcnt vmcnt({CAP - n})"); vm.q = vm.q[len(vm.q) - (CAP - n):]
        if it[0] == "W":
            _, r, c = it
            emit(wo_dma(20 + r, 32 * c, ('c', r * REG + c * 4096))); vm.issue(it, 4)
        else:
            emit(kv_issue(*it))
        assert len(vm.q) <= 63, (st_, len(vm.q))
do_issue(-1)
emit(q_need(0))
for st_ in range(NS):
    I("s_barrier")
    if st_ == NQ + NA + 27:
        pass
    if st_ < NQ: emit(q_iss(st_))
    if EC and st_ == NS - 1: I(SAMP); vm.issue("samp")
    do_issue(st_)
    if st_ == NQ + 6: I(f"s_load_dword s{sNonce}, s[38:39], 0")
    if st_ == NQ + 16:
        emit(["s_waitcnt lgkmcnt(0)", f"s_cmp_lg_u32 s{sNonce}, 0", "s_cbranch_scc1 L_nok",
              "s_memrealtime s[16:17]", "v_mov_b32 v7, 0", "s_waitcnt lgkmcnt(0)", "s_or_b32 s16, s16, 1", "v_mov_b32 v6, s16",
              "s_mov_b64 exec, 1", f"buffer_atomic_cmpswap v[6:7], off, {srd(rDBG)}, 0 sc0 sc1", "s_mov_b64 exec, -1", "s_waitcnt vmcnt(0)",
              f"v_readfirstlane_b32 s{sNonce}, v6", f"s_cmp_lg_u32 s{sNonce}, 0", f"s_cselect_b32 s{sNonce}, s{sNonce}, s16", "L_nok:"] + [f"v_mov_b32 v6, {NLDS}", f"v_mov_b32 v7, s{sNonce}", "ds_write_b32 v6, v7", "s_waitcnt lgkmcnt(0)"])
    if st_ == NS - 8: emit(tail_bases() + zero_acc())
    if st_ + 1 < NQ: emit(q_need(st_ + 1))
    need = [(k, it) for k in "KV" for it in range(64) if use_step(k, it) == st_ + 1 and vm.has((k, it))]
    if need:
        last = max(need, key=lambda t: max(i for i, x in enumerate(vm.q) if x == t))
        I(vm.wait(last))
I(f"s_cmp_ge_u32 s{sI}, 30"); I("s_cbranch_scc1 L_end")
def tail_main(vm):
    o = []
    for c in range(8):
        if vm.has(c): o.append(vm.wait(c))
        if c >= 3: o.append(f"s_waitcnt lgkmcnt({8 if c < 7 else 0})")
        o += o_mfmas(c % 3, c)
        if c + 3 >= 5 and vm.has("rf"): o.append(vm.wait("rf"))
        if c + 3 < 8: o += f_reads((c + 3) % 5, c % 3)
    return o
if EC:
    lt = ["s_waitcnt vmcnt(0)", CHK, "s_cbranch_vccnz L_late", "L_early:"]
    vm = VM()
    for c in range(NE): lt += o_loads(sXb, c, c); vm.issue(c, 4)
    lt += ["s_barrier"] + stamp(4) + tail_pre_reads() + tail_refill(); vm.issue("rf", 12)
    for c in range(NE, 8): lt += o_loads(sXb, c, c); vm.issue(c, 4)
    lt += tail_main(vm) + ["s_branch L_red"]
    errs += check_hazards(lt, "E")
    emit(lt)
    lt = ["L_late:", "s_barrier"] + tail_pre_reads() + tail_refill()
else:
    lt = ["s_waitcnt vmcnt(0)", "s_barrier"] + tail_pre_reads() + tail_refill()
emit(lt)

TP = env("TP", 1)
pl_ = poll()
if env("PX", 1): pl_ = ["s_mov_b64 exec, 15"] + pl_ + ["s_mov_b64 exec, -1"]
tl = ["L_tail:"] + (["s_setprio 0"] if TP else []) + pl_ + (["s_setprio 2"] if TP == 1 else []) + stamp(4)
vm = VM()
def poll2(nm_, mask, first):
    smp = ["s_mov_b64 exec, 15", SAMP, "s_waitcnt vmcnt(0)", CHK, "s_mov_b64 exec, -1"]
    o = [f"s_mov_b32 s{sSpin}, 200000"] + ([f"s_branch L_{nm_}c"] if not first else []) + [f"L_{nm_}:", "s_setprio 0"] + smp
    o += [f"s_sub_u32 s{sSpin}, s{sSpin}, 1", f"s_cbranch_scc1 L_{nm_}d", f"L_{nm_}c:", f"s_and_b32 s{sT0}, vcc_lo, {mask}", f"s_cbranch_scc1 L_{nm_}", f"L_{nm_}d:", "s_setprio 2"]
    return o
if env("P2", 0): tl = ["L_tail:"] + poll2("pa", 3, True) + stamp(4)
for c in range(8):
    if c == 4 and env("P2", 0): tl += poll2("pb", 12, False)
    tl += o_loads(sXb, c, c); vm.issue(c, 4)
tl += ["L_tail2:"] + tail_main(vm) + ["L_red:"]
tl += stamp(5)
tl += [f"v_add_u32 v6, s{sReg}, v1", "s_nop 7", "s_nop 2"]
for q in range(16): tl.append(f"ds_write_b128 v6, {v(ACC+4*q,4)} offset:{q*1024}")
tl += [f"s_lshl_b32 s{sT0}, s{sWave}, 11", f"v_add_u32 v2, s{sT0}, v1", f"v_add_u32 v3, {3*REG}, v2", f"v_add_u32 v4, {6*REG}, v2"]
tl += [f"s_lshl_b32 s{sT0}, s{sMt}, 1", f"s_lshr_b32 s{sT1}, s{sWave}, 2", f"s_add_u32 s{sT0}, s{sT0}, s{sT1}", f"s_mul_i32 s{sT0}, s{sT0}, 81920",
       f"s_mul_i32 s{sT1}, s{sBr}, 1280", f"s_add_u32 s{sT0}, s{sT0}, s{sT1}", f"s_add_u32 s{sT0}, s{sT0}, s{sWOb}",
       f"s_and_b32 s{sT1}, s{sWave}, 3", f"s_lshl_b32 s{sT1}, s{sT1}, 5", f"s_add_u32 s{sT0}, s{sT0}, s{sT1}",
       "v_and_b32 v6, 31, v0", "v_mul_u32_u24 v6, 2560, v6", "v_lshrrev_b32 v7, 5, v0", "v_lshl_add_u32 v5, v7, 4, v6"]
tl += ["s_waitcnt lgkmcnt(0)", "s_barrier"]
for r in range(8):
    for j in range(2):
        if r == 7 and j == 1: tl.append("s_waitcnt lgkmcnt(14)")
        tl.append(f"ds_read_b128 {v(OB+8*r+4*j,4)}, v{2 + r//3} offset:{(r%3)*REG + j*1024}")
for r in range(1, 8):
    tl.append(f"s_waitcnt lgkmcnt({14 - 2*r})")
    tl += [f"v_add_f32 v{OB+i}, v{OB+i}, v{OB+8*r+i}" for i in range(8)]
tl += [f"v_cvt_pk_bf16_f32 v{ACC+i}, v{OB+2*i}, v{OB+2*i+1}" for i in range(4)]
tl += [f"buffer_store_dwordx4 {v(ACC,4)}, v5, {srd(rOUT)}, s{sT0} offen"]
tl += stamp(6)
if ST and env("STM", 0): tl += ["v_mov_b32 v253, s92", f"buffer_store_dword v253, v255, {srd(rWS)}, s93 offen"]
tl += ["L_end:", "s_endpgm"]
emit(tl)
errs += check_hazards(lt + tl, "T")
for x in errs: print(x)
assert not errs

A.raw('.section .rodata,"a"')
A.raw(".p2align 6")
A.raw(f".amdhsa_kernel {NAME}")
for l in ("next_free_vgpr 256", "next_free_sgpr 96", "accum_offset 256", "group_segment_fixed_size 0", "kernarg_size 104",
          "user_sgpr_count 2", "user_sgpr_kernarg_segment_ptr 1", "system_sgpr_workgroup_id_x 1"):
    A.raw("  .amdhsa_" + l)
A.raw(".end_amdhsa_kernel")
open(out_path, "w").write(A.text())
```
